```python
import torch

def _softmax(x, axis=-1):
    return torch.softmax(x, dim=axis)
def _gelu(x):
    return torch.nn.functional.gelu(x, approximate="tanh")
def _silu(x):
    return torch.nn.functional.silu(x)
def _sigmoid(x):
    return torch.sigmoid(x)
def _layernorm(x, axis=-1, eps=1e-5):
    m = x.mean(dim=axis, keepdim=True)
    v = x.var(dim=axis, keepdim=True, unbiased=False)
    return (x - m) / torch.sqrt(v + eps)
def _scatter_add(tgt, idx, src, axis=0):
    return tgt.clone().index_add_(axis, idx, src)
def _segment_sum(src, seg, n):
    out = torch.zeros((n,) + src.shape[1:], dtype=src.dtype)
    return out.index_add_(0, seg, src)
def _pad(x, pw):
    flat = tuple(v for pair in reversed(pw) for v in pair)
    return torch.nn.functional.pad(x, flat)

kernel_name = 'concat_heads__sliding_block_cached__mha_block_cached__decode'

def setup_inputs():

    _w = (lambda a: (lambda t: t.to(torch.bfloat16) if t.is_floating_point() else t)(torch.as_tensor(a)))
    def _A_setup():
        B, Sq, D = 1, 1, 512
        Hq, Hkv, Sk, Dh = 32, 8, 16384, 128
        assert Hq % Hkv == 0, (Hq, Hkv)
        return {
            "x": _w((lambda *s: torch.randn(*s, dtype=torch.bfloat16) * 0.8)(B, Sq, D)),
            "k_cache": _w((lambda *s: torch.randn(*s, dtype=torch.bfloat16) * 1.6)(B, Hkv, Sk, Dh)),
            "v_cache": _w((lambda *s: torch.randn(*s, dtype=torch.bfloat16) * 0.2)(B, Hkv, Sk, Dh)),
            "wq": _w((lambda *s: torch.randn(*s, dtype=torch.bfloat16) * 1.6)(D, Hq * Dh) * (D ** -0.5)),
            "wo": _w((lambda *s: torch.randn(*s, dtype=torch.bfloat16) * 0.2)(Hq * Dh, D) * ((Hq * Dh) ** -0.5)),
        }
    _A_in = _A_setup()

    def _B_setup():
        B, Sq, D = 1, 1, 512
        H, Sk, Dh = 32, 16384, 128
        return {
            "x": _w((lambda *s: torch.randn(*s, dtype=torch.bfloat16) * 0.8)(B, Sq, D)),
            "k_cache": _w((lambda *s: torch.randn(*s, dtype=torch.bfloat16) * 1.6)(B, H, Sk, Dh)),
            "v_cache": _w((lambda *s: torch.randn(*s, dtype=torch.bfloat16) * 0.2)(B, H, Sk, Dh)),
            "wq": _w((lambda *s: torch.randn(*s, dtype=torch.bfloat16) * 1.6)(D, H * Dh) * (D ** -0.5)),
            "wo": _w((lambda *s: torch.randn(*s, dtype=torch.bfloat16) * 0.2)(H * Dh, D) * ((H * Dh) ** -0.5)),
        }
    _B_in = _B_setup()

    return {
        "A_x": _A_in["x"],
        "A_k_cache": _A_in["k_cache"],
        "A_v_cache": _A_in["v_cache"],
        "A_wq": _A_in["wq"],
        "A_wo": _A_in["wo"],
        "B_x": _B_in["x"],
        "B_k_cache": _B_in["k_cache"],
        "B_v_cache": _B_in["v_cache"],
        "B_wq": _B_in["wq"],
        "B_wo": _B_in["wo"],
    }

def reference(A_x, A_k_cache, A_v_cache, A_wq, A_wo, B_x, B_k_cache, B_v_cache, B_wq, B_wo):
    def _A_ref(x, k_cache, v_cache, wq, wo):
        B, Sq, D = x.shape
        Hq, Dh = 32, 128
        Hkv, Sk = k_cache.shape[1], k_cache.shape[2]
        W = min(4096, max(256, Sk // 4))
        rep = Hq // Hkv
        q = (lambda x, *d: x.permute(*d))((x @ wq).reshape(B, Sq, Hq, Dh), 0, 2, 1, 3)
        k = (lambda x, n, axis: torch.repeat_interleave(x, n, dim=axis))(k_cache[:, :, Sk - W:, :], rep, axis=1)
        v = (lambda x, n, axis: torch.repeat_interleave(x, n, dim=axis))(v_cache[:, :, Sk - W:, :], rep, axis=1)
        scores = torch.einsum("bhqd,bhkd->bhqk", q, k) * (Dh ** -0.5)
        p = _softmax(scores, axis=-1)
        o = torch.einsum("bhqk,bhkd->bhqd", p, v)
        return (lambda x, *d: x.permute(*d))(o, 0, 2, 1, 3).reshape(B, Sq, Hq * Dh) @ wo

    def _B_ref(x, k_cache, v_cache, wq, wo):
        B, Sq, D = x.shape
        H, Dh = 32, 128
        q = (lambda x, *d: x.permute(*d))((x @ wq).reshape(B, Sq, H, Dh), 0, 2, 1, 3)
        scores = torch.einsum("bhqd,bhkd->bhqk", q, k_cache) * (Dh ** -0.5)
        p = _softmax(scores, axis=-1)
        o = torch.einsum("bhqk,bhkd->bhqd", p, v_cache)
        return (lambda x, *d: x.permute(*d))(o, 0, 2, 1, 3).reshape(B, Sq, H * Dh) @ wo

    a = _A_ref(A_x, A_k_cache, A_v_cache, A_wq, A_wo)
    b = _B_ref(B_x, B_k_cache, B_v_cache, B_wq, B_wo)
    return torch.concatenate([a, b], axis=-1)
```

```python
import sys, math, struct

NAME = "concat_heads__sliding_block_cached__mha_block_cached__decode"

def f32bits(x):
    return struct.unpack("<I", struct.pack("<f", x))[0]

CSC = (128.0 ** -0.5) * math.log2(math.e)

class Gen:
    def __init__(self):
        self.lines = []
    def __call__(self, s=""):
        self.lines.append("    " + s if s and not s.endswith(":") else s)
    def label(self, s):
        self.lines.append(s + ":")
    def text(self):
        return "\n".join(self.lines) + "\n"

def build(nt_kv=True, nt_w=False):
    g = Gen()
    NTKV = " nt" if nt_kv else ""
    NTW = " nt" if nt_w else ""
    KA = 16
    sAx, sAk, sAv, sAwq, sAwo, sBx, sBk, sBv = [KA + 2 * i for i in range(8)]
    sBwq, sBwo, sOut, sDbg = [32 + 2 * i for i in range(4)]
    sWs = 40
    sH, sSP, sG, sIt, sT, sC, sPidx = 3, 4, 5, 6, 7, 8, 9
    so0, so1, so2, so3 = 10, 11, 12, 13
    sT2, sT3 = 14, 15
    SRD_BK, SRD_BV, SRD_AK, SRD_AV = 44, 48, 52, 56
    SRD_PK, SRD_PV = 60, 64
    SRD_W = 68
    SRD_X = 72
    SRD_WS = 76
    sOL = 80
    sOH = 96
    sSave = 100
    vTid, vKV, vWQ, vXo, vWO = 0, 1, 2, 3, 4
    vQPw, vQPr, vOPw = 5, 6, 7
    vQ = 8
    vO = 12
    vM, vL = 20, 21
    vSv = 22
    vX = 36
    vS = 44
    vP = 52
    vT = 60
    KB = [64, 128]
    VB = [96, 160]
    R = 192
    L_QP = 0
    L_OP = 8192
    L_ML = 12288
    L_YP = 16384

    def srd(dst, base, off_s=None, size=None, off_imm=None):
        if off_s is not None:
            g(f"s_add_u32 s{dst}, s{base}, s{off_s}")
            g(f"s_addc_u32 s{dst+1}, s{base+1}, 0")
        elif off_imm is not None:
            g(f"s_add_u32 s{dst}, s{base}, {off_imm}")
            g(f"s_addc_u32 s{dst+1}, s{base+1}, 0")
        else:
            g(f"s_mov_b32 s{dst}, s{base}")
            g(f"s_mov_b32 s{dst+1}, s{base+1}")
        g(f"s_mov_b32 s{dst+2}, {size}")
        g(f"s_mov_b32 s{dst+3}, 0x00020000")

    def tile_loads(dst, srdreg, sa, sb, flag):
        for i in range(8):
            so = sa if i < 4 else sb
            g(f"buffer_load_dwordx4 v[{dst+4*i}:{dst+4*i+3}], v{vKV}, s[{srdreg}:{srdreg+3}], s{so} offen offset:{(i%4)*1024}{flag}")

    def x_loads(xbase):
        srd(SRD_X, xbase, size=1024)
        g(f"buffer_load_dwordx4 v[{vX}:{vX+3}], v{vXo}, s[{SRD_X}:{SRD_X+3}], 0 offen")
        g(f"buffer_load_dwordx4 v[{vX+4}:{vX+7}], v{vXo}, s[{SRD_X}:{SRD_X+3}], 0 offen offset:16")

    def wq_loads(wbase):
        g(f"s_lshl_b32 s{sT}, s{sH}, 8")
        g(f"s_add_u32 s{SRD_W}, s{wbase}, s{sT}")
        g(f"s_addc_u32 s{SRD_W+1}, s{wbase+1}, 0")
        g(f"s_sub_u32 s{SRD_W+2}, 0x400000, s{sT}")
        g(f"s_mov_b32 s{SRD_W+3}, 0x00020000")
        g(f"s_mov_b32 s{sT}, 0")
        for i in range(16):
            g(f"buffer_load_dwordx4 v[{R+4*i}:{R+4*i+3}], v{vWQ}, s[{SRD_W}:{SRD_W+3}], s{sT} offen{NTW}")
            if i < 15:
                g(f"s_add_u32 s{sT}, s{sT}, 0x2000")

    def wo_loads(wbase):
        g(f"s_lshl_b32 s{sT}, s{sH}, 17")
        g(f"s_add_u32 s{SRD_W}, s{wbase}, s{sT}")
        g(f"s_addc_u32 s{SRD_W+1}, s{wbase+1}, 0")
        g(f"s_mov_b32 s{SRD_W+2}, 0x20000")
        g(f"s_mov_b32 s{SRD_W+3}, 0x00020000")
        g(f"s_mov_b32 s{sT}, 0")
        for i in range(16):
            g(f"buffer_load_dwordx4 v[{R+4*i}:{R+4*i+3}], v{vWO}, s[{SRD_W}:{SRD_W+3}], s{sT} offen offset:{(i%4)*1024}{NTW}")
            if i % 4 == 3 and i < 15:
                g(f"s_add_u32 s{sT}, s{sT}, 0x1000")

    def set_soffs(base):
        g(f"s_mov_b32 s{so0}, {base}")
        g(f"s_mov_b32 s{so1}, {base+4096}")
        g(f"s_mov_b32 s{so2}, {base+65536}")
        g(f"s_mov_b32 s{so3}, {base+65536+4096}")

    def set_pf(k, v):
        g(f"s_mov_b64 s[{SRD_PK}:{SRD_PK+1}], s[{k}:{k+1}]")
        g(f"s_mov_b64 s[{SRD_PK+2}:{SRD_PK+3}], s[{k+2}:{k+3}]")
        g(f"s_mov_b64 s[{SRD_PV}:{SRD_PV+1}], s[{v}:{v+1}]")
        g(f"s_mov_b64 s[{SRD_PV+2}:{SRD_PV+3}], s[{v+2}:{v+3}]")

    def reduce_scatter8(a):
        g("s_nop 1")
        for e in range(4):
            g(f"v_permlane32_swap_b32 v{a+e}, v{a+e+4}")
        g("s_nop 1")
        for e in range(4):
            g(f"v_add_f32 v{a+e}, v{a+e}, v{a+e+4}")
        g("s_nop 1")
        for e in range(2):
            g(f"v_permlane16_swap_b32 v{a+e}, v{a+e+2}")
        g("s_nop 1")
        for e in range(2):
            g(f"v_add_f32 v{a+e}, v{a+e}, v{a+e+2}")

    def allreduce_rows(x, t1, op):
        g(f"v_mov_b32 v{t1}, v{x}")
        g("s_nop 1")
        g(f"v_permlane32_swap_b32 v{x}, v{t1}")
        g("s_nop 1")
        g(f"{op} v{x}, v{x}, v{t1}")
        g(f"v_mov_b32 v{t1}, v{x}")
        g("s_nop 1")
        g(f"v_permlane16_swap_b32 v{x}, v{t1}")
        g("s_nop 1")
        g(f"{op} v{x}, v{x}, v{t1}")

    kn = "attn_main_kernel"
    g.lines.append(f".globl {kn}")
    g.lines.append(".p2align 8")
    g.lines.append(f".type {kn},@function")
    g.label(kn)
    g("s_cmp_ge_u32 s2, 0x100")
    g("s_cbranch_scc1 L_main_end")
    g(f"s_load_dwordx16 s[16:31], s[0:1], 0")
    g(f"s_load_dwordx8 s[32:39], s[0:1], 64")
    g(f"s_load_dwordx2 s[40:41], s[0:1], 96")
    g(f"s_and_b32 s{sG}, s2, 7")
    g(f"s_lshr_b32 s{sT}, s2, 3")
    g(f"s_and_b32 s{sT}, s{sT}, 3")
    g(f"s_lshl_b32 s{sH}, s{sG}, 2")
    g(f"s_add_u32 s{sH}, s{sH}, s{sT}")
    g(f"s_lshr_b32 s{sSP}, s2, 5")
    g(f"s_lshl_b32 s{sPidx}, s{sH}, 3")
    g(f"s_add_u32 s{sPidx}, s{sPidx}, s{sSP}")
    g(f"s_mov_b32 s{sC}, 0x{f32bits(CSC):08x}")
    g(f"v_lshrrev_b32 v{vT}, 6, v0")
    g(f"v_and_b32 v{vT+1}, 63, v0")
    g(f"v_bfe_u32 v{vT+2}, v0, 4, 2")
    g(f"v_and_b32 v{vT+3}, 15, v0")
    g(f"v_lshlrev_b32 v{vKV}, 13, v{vT}")
    g(f"v_lshl_add_u32 v{vKV}, v{vT+1}, 4, v{vKV}")
    g(f"v_lshlrev_b32 v{vWO}, 14, v{vT}")
    g(f"v_lshl_add_u32 v{vWO}, v{vT+1}, 4, v{vWO}")
    g(f"v_lshlrev_b32 v{vXo}, 6, v{vT}")
    g(f"v_lshl_add_u32 v{vXo}, v{vT+2}, 4, v{vXo}")
    g(f"v_lshlrev_b32 v{vWQ}, 13, v{vXo}")
    g(f"v_lshl_add_u32 v{vWQ}, v{vT+3}, 4, v{vWQ}")
    g(f"v_lshlrev_b32 v{vXo}, 1, v{vXo}")
    g(f"v_lshlrev_b32 v{vQPw}, 9, v{vT}")
    g(f"v_lshl_add_u32 v{vQPw}, v{vT+3}, 5, v{vQPw}")
    g(f"v_lshl_add_u32 v{vQPw}, v{vT+2}, 3, v{vQPw}")
    g(f"v_add_u32 v{vOPw}, {L_OP}, v{vQPw}")
    g(f"v_lshlrev_b32 v{vQPr}, 5, v{vT+3}")
    g(f"s_lshl_b32 s{sT2}, s{sH}, 22")
    g(f"s_lshl_b32 s{sT3}, s{sSP}, 19")
    g(f"s_add_u32 s{sT2}, s{sT2}, s{sT3}")
    set_soffs(0)
    g("s_waitcnt lgkmcnt(0)")
    x_loads(sBx)
    wq_loads(sBwq)
    srd(SRD_BK, sBk, off_s=sT2, size=0x80000)
    srd(SRD_BV, sBv, off_s=sT2, size=0x80000)
    tile_loads(KB[0], SRD_BK, so0, so1, NTKV)
    tile_loads(VB[0], SRD_BV, so0, so1, NTKV)
    tile_loads(KB[1], SRD_BK, so2, so3, NTKV)
    tile_loads(VB[1], SRD_BV, so2, so3, NTKV)
    g(f"s_lshl_b32 s{sT2}, s{sG}, 22")
    g(f"s_lshl_b32 s{sT3}, s{sSP}, 17")
    g(f"s_add_u32 s{sT2}, s{sT2}, s{sT3}")
    g(f"s_add_u32 s{sT2}, s{sT2}, {12288*256}")
    srd(SRD_AK, sAk, off_s=sT2, size=0x20000)
    srd(SRD_AV, sAv, off_s=sT2, size=0x20000)
    srd(SRD_WS, sWs, size=0x200000)
    set_pf(SRD_BK, SRD_BV)
    set_soffs(131072)
    g(f"s_mov_b32 s{sIt}, 0")

    g.label("L_Q")
    g("s_waitcnt vmcnt(32)")
    acc = vS
    for j in range(8):
        g(f"v_and_b32 v{vP}, 0xffff, v{vX+j}")
        g(f"v_lshlrev_b32 v{vP+1}, 16, v{vX+j}")
        g(f"v_lshrrev_b32 v{vP+2}, 16, v{vX+j}")
        g(f"v_and_b32 v{vP+3}, 0xffff0000, v{vX+j}")
        for half in range(2):
            row = 2 * j + half
            for e in range(4):
                w = R + row * 4 + e
                if row == 0:
                    g(f"v_dot2_f32_bf16 v{acc+2*e}, v{w}, v{vP+2*half}, 0")
                    g(f"v_dot2_f32_bf16 v{acc+2*e+1}, v{w}, v{vP+2*half+1}, 0")
                else:
                    g(f"v_dot2c_f32_bf16 v{acc+2*e}, v{w}, v{vP+2*half}")
                    g(f"v_dot2c_f32_bf16 v{acc+2*e+1}, v{w}, v{vP+2*half+1}")
    g("s_nop 3")
    reduce_scatter8(acc)
    g(f"ds_write_b64 v{vQPw}, v[{acc}:{acc+1}]")
    g("s_waitcnt lgkmcnt(0)")
    g("s_barrier")
    for w in range(8):
        g(f"ds_read_b128 v[{R+8*w}:{R+8*w+3}], v{vQPr} offset:{w*512}")
        g(f"ds_read_b128 v[{R+8*w+4}:{R+8*w+7}], v{vQPr} offset:{w*512+16}")
    g("s_waitcnt lgkmcnt(0)")
    for st in (32, 16, 8):
        for k in range(st):
            g(f"v_add_f32 v{R+k}, v{R+k}, v{R+k+st}")
    for e in range(4):
        g(f"v_cvt_pk_bf16_f32 v{vQ+e}, v{R+2*e}, v{R+2*e+1}")
    g(f"v_mov_b32 v{vM}, 0xff800000")
    g(f"v_mov_b32 v{vL}, 0")
    for e in range(8):
        g(f"v_mov_b32 v{vO+e}, 0")
    g(f"v_add_u32 v{vQPw}, 4096, v{vQPw}")
    g(f"v_add_u32 v{vQPr}, 4096, v{vQPr}")
    g(f"s_cmp_lg_u32 s{sIt}, 0")
    g("s_cbranch_scc1 L_Q_A")
    x_loads(sAx)
    wq_loads(sAwq)
    g("s_branch L_loop")
    g.label("L_Q_A")
    wo_loads(sAwo)

    g.label("L_loop")
    for b in range(2):
        K, V = KB[b], VB[b]
        sa, sb = (so0, so1) if b == 0 else (so2, so3)
        g("s_waitcnt vmcnt(24)")
        for e in range(4):
            for i in range(8):
                if e == 0:
                    g(f"v_dot2_f32_bf16 v{vS+i}, v{K+4*i}, v{vQ}, 0")
                else:
                    g(f"v_dot2c_f32_bf16 v{vS+i}, v{K+4*i+e}, v{vQ+e}")
        tile_loads(K, SRD_PK, sa, sb, NTKV)
        for st in (8, 4, 2, 1):
            for i in range(8):
                g(f"v_add_f32_dpp v{vS+i}, v{vS+i}, v{vS+i} row_ror:{st} row_mask:0xf bank_mask:0xf")
        mn, nmc, al = vT, vT + 1, vT + 2
        g(f"v_max3_f32 v{mn}, v{vS}, v{vS+1}, v{vS+2}")
        g(f"v_max3_f32 v{mn}, v{mn}, v{vS+3}, v{vS+4}")
        g(f"v_max3_f32 v{mn}, v{mn}, v{vS+5}, v{vS+6}")
        g(f"v_max3_f32 v{mn}, v{mn}, v{vS+7}, v{vM}")
        g(f"v_mul_f32 v{nmc}, s{sC}, v{mn}")
        g(f"v_fma_f32 v{al}, v{vM}, s{sC}, -v{nmc}")
        for i in range(8):
            g(f"v_fma_f32 v{vS+i}, v{vS+i}, s{sC}, -v{nmc}")
        g(f"v_exp_f32 v{al}, v{al}")
        for i in range(8):
            g(f"v_exp_f32 v{vS+i}, v{vS+i}")
        g(f"v_mov_b32 v{vM}, v{mn}")
        g(f"v_fma_f32 v{vL}, v{vL}, v{al}, v{vS}")
        for e in range(8):
            g(f"v_mul_f32 v{vO+e}, v{vO+e}, v{al}")
        for i in range(1, 8):
            g(f"v_add_f32 v{vL}, v{vL}, v{vS+i}")
        for i in range(8):
            g(f"v_cvt_pk_bf16_f32 v{vP+i}, v{vS+i}, 0")
        for i in range(8):
            g(f"v_lshlrev_b32 v{vS+i}, 16, v{vP+i}")
        g("s_waitcnt vmcnt(24)")
        for i in range(8):
            for e in range(4):
                g(f"v_dot2c_f32_bf16 v{vO+2*e}, v{V+4*i+e}, v{vP+i}")
                g(f"v_dot2c_f32_bf16 v{vO+2*e+1}, v{V+4*i+e}, v{vS+i}")
        tile_loads(V, SRD_PV, sa, sb, NTKV)
    g(f"s_add_u32 s{sIt}, s{sIt}, 1")
    g(f"s_cmp_eq_u32 s{sIt}, 1")
    g("s_cbranch_scc1 L_T1")
    g(f"s_cmp_eq_u32 s{sIt}, 2")
    g("s_cbranch_scc1 L_T2")
    g(f"s_cmp_eq_u32 s{sIt}, 4")
    g("s_cbranch_scc1 L_T4")
    g.label("L_O")
    g("s_nop 3")
    mw, f, t1 = vT, vT + 1, vT + 2
    g(f"v_mov_b32 v{mw}, v{vM}")
    allreduce_rows(mw, t1, "v_max_f32")
    g(f"v_sub_f32 v{f}, v{vM}, v{mw}")
    g(f"v_mul_f32 v{f}, s{sC}, v{f}")
    g(f"v_exp_f32 v{f}, v{f}")
    g("s_nop 0")
    g(f"v_mul_f32 v{vL}, v{vL}, v{f}")
    for e in range(8):
        g(f"v_mul_f32 v{vO+e}, v{vO+e}, v{f}")
    allreduce_rows(vL, t1, "v_add_f32")
    reduce_scatter8(vO)
    g(f"ds_write_b64 v{vOPw}, v[{vO}:{vO+1}]")
    g(f"v_lshrrev_b32 v{t1}, 6, v0")
    g(f"v_lshlrev_b32 v{t1}, 3, v{t1}")
    g(f"v_mov_b32 v{f}, v{vL}")
    g(f"ds_write_b64 v{t1}, v[{mw}:{f}] offset:{L_ML}")
    g("s_waitcnt lgkmcnt(0)")
    g("s_barrier")
    g(f"v_mov_b32 v{t1}, 0")
    for k in range(4):
        g(f"ds_read_b128 v[{vS+4*k}:{vS+4*k+3}], v{t1} offset:{L_ML+16*k}")
    g(f"v_lshrrev_b32 v{mw}, 6, v0")
    g(f"v_and_b32 v{f}, 15, v0")
    g(f"v_lshl_add_u32 v{mw}, v{mw}, 4, v{f}")
    g(f"v_lshlrev_b32 v{mw}, 2, v{mw}")
    for w in range(8):
        g(f"ds_read_b32 v{vO+w}, v{mw} offset:{L_OP+w*512}")
    g("s_waitcnt lgkmcnt(0)")
    Mx = vM
    g(f"v_max3_f32 v{Mx}, v{vS}, v{vS+2}, v{vS+4}")
    g(f"v_max3_f32 v{Mx}, v{Mx}, v{vS+6}, v{vS+8}")
    g(f"v_max3_f32 v{Mx}, v{Mx}, v{vS+10}, v{vS+12}")
    g(f"v_max_f32 v{Mx}, v{Mx}, v{vS+14}")
    for w in range(8):
        g(f"v_sub_f32 v{vS+2*w}, v{vS+2*w}, v{Mx}")
    for w in range(8):
        g(f"v_mul_f32 v{vS+2*w}, s{sC}, v{vS+2*w}")
    for w in range(8):
        g(f"v_exp_f32 v{vS+2*w}, v{vS+2*w}")
    g("s_nop 0")
    g(f"v_mul_f32 v{vL}, v{vS}, v{vS+1}")
    g(f"v_mul_f32 v{f}, v{vS}, v{vO}")
    for w in range(1, 8):
        g(f"v_fmac_f32 v{vL}, v{vS+2*w}, v{vS+2*w+1}")
        g(f"v_fmac_f32 v{f}, v{vS+2*w}, v{vO+w}")
    g(f"v_cvt_pk_bf16_f32 v{f}, v{f}, 0")
    g("s_nop 1")
    for i in range(16):
        g(f"v_readlane_b32 s{sOL+i}, v{f}, {i}")
    g("s_waitcnt vmcnt(32)")
    y = vO
    for i in range(16):
        g(f"s_lshl_b32 s{sOH+(i%4)}, s{sOL+i}, 16")
        for e in range(4):
            w = R + 4 * i + e
            if i == 0:
                g(f"v_dot2_f32_bf16 v{y+2*e}, v{w}, s{sOL+i}, 0")
                g(f"v_dot2_f32_bf16 v{y+2*e+1}, v{w}, s{sOH+(i%4)}, 0")
            else:
                g(f"v_dot2c_f32_bf16 v{y+2*e}, s{sOL+i}, v{w}")
                g(f"v_dot2c_f32_bf16 v{y+2*e+1}, s{sOH+(i%4)}, v{w}")
    g(f"v_lshlrev_b32 v{t1}, 5, v0")
    g("s_nop 1")
    g(f"ds_write_b128 v{t1}, v[{y}:{y+3}] offset:{L_YP}")
    g(f"ds_write_b128 v{t1}, v[{y+4}:{y+7}] offset:{L_YP+16}")
    g(f"s_cmp_eq_u32 s{sIt}, 5")
    g("s_cbranch_scc1 L_O_noissue")
    wo_loads(sBwo)
    g.label("L_O_noissue")
    g("s_waitcnt lgkmcnt(0)")
    g("s_barrier")
    g(f"v_lshlrev_b32 v{t1}, 2, v0")
    for w in range(8):
        g(f"ds_read_b32 v{vS+w}, v{t1} offset:{L_YP+w*2048}")
    g(f"s_cmp_eq_u32 s{sIt}, 5")
    g(f"s_cselect_b32 s{sT}, 0x100, 0")
    g(f"s_add_u32 s{sT}, s{sT}, s{sPidx}")
    g(f"s_lshl_b32 s{sT2}, s{sT}, 11")
    g(f"s_lshl_b32 s{sT3}, s{sT}, 3")
    g(f"s_add_u32 s{sT3}, s{sT3}, 0x100000")
    g("s_waitcnt lgkmcnt(0)")
    for st in (4, 2, 1):
        for k in range(st):
            g(f"v_add_f32 v{vS+k}, v{vS+k}, v{vS+k+st}")
    g(f"buffer_store_dword v{vS}, v{t1}, s[{SRD_WS}:{SRD_WS+3}], s{sT2} offen")
    g(f"v_cmp_eq_u32 vcc, 0, v0")
    g(f"s_and_saveexec_b64 s[{sSave}:{sSave+1}], vcc")
    g("s_cbranch_execz L_O_noml")
    g(f"buffer_store_dwordx2 v[{vM}:{vL}], v{t1}, s[{SRD_WS}:{SRD_WS+3}], s{sT3} offen")
    g.label("L_O_noml")
    g(f"s_mov_b64 exec, s[{sSave}:{sSave+1}]")
    g(f"s_cmp_eq_u32 s{sIt}, 5")
    g("s_cbranch_scc1 L_main_end")
    g("s_nop 1")
    for k in range(14):
        g(f"v_mov_b32 v{vQ+k}, v{vSv+k}")
    set_soffs(3 * 131072)
    g("s_branch L_loop")
    g.label("L_T1")
    set_pf(SRD_AK, SRD_AV)
    set_soffs(0)
    g("s_branch L_loop")
    g.label("L_T2")
    g("s_nop 3")
    for k in range(14):
        g(f"v_mov_b32 v{vSv+k}, v{vQ+k}")
    set_pf(SRD_BK, SRD_BV)
    set_soffs(2 * 131072)
    g("s_branch L_Q")
    g.label("L_T4")
    set_soffs(4 * 131072)
    g("s_branch L_loop")
    g.label("L_main_end")
    g("s_endpgm")

    fn = "attn_final_kernel"
    g.lines.append(f".globl {fn}")
    g.lines.append(".p2align 8")
    g.lines.append(f".type {fn},@function")
    g.label(fn)
    g("s_cmp_ge_u32 s2, 64")
    g("s_cbranch_scc1 L_fin_end")
    g("s_load_dwordx2 s[4:5], s[0:1], 80")
    g("s_load_dwordx2 s[6:7], s[0:1], 96")
    g("s_lshr_b32 s3, s2, 5")
    g("s_and_b32 s16, s2, 31")
    g("s_lshl_b32 s17, s3, 19")
    g("s_lshl_b32 s18, s16, 6")
    g("s_add_u32 s17, s17, s18")
    g("s_lshl_b32 s19, s3, 11")
    g("s_add_u32 s19, s19, 0x100000")
    g(f"s_mov_b32 s20, 0x{f32bits(CSC):08x}")
    g("v_lshrrev_b32 v1, 2, v0")
    g("v_and_b32 v2, 3, v0")
    g("v_lshlrev_b32 v3, 13, v1")
    g("v_lshl_add_u32 v3, v2, 4, v3")
    g("v_add_u32 v4, 4096, v3")
    g("v_lshlrev_b32 v5, 3, v0")
    g("s_waitcnt lgkmcnt(0)")
    g("s_mov_b32 s8, s6")
    g("s_mov_b32 s9, s7")
    g("s_mov_b32 s10, 0x200000")
    g("s_mov_b32 s11, 0x00020000")
    g("s_mov_b32 s12, s4")
    g("s_mov_b32 s13, s5")
    g("s_mov_b32 s14, 2048")
    g("s_mov_b32 s15, 0x00020000")
    g("buffer_load_dwordx2 v[6:7], v5, s[8:11], s19 offen")
    g("buffer_load_dwordx4 v[8:11], v3, s[8:11], s17 offen")
    g("buffer_load_dwordx4 v[12:15], v3, s[8:11], s17 offen offset:2048")
    g("buffer_load_dwordx4 v[16:19], v4, s[8:11], s17 offen")
    g("buffer_load_dwordx4 v[20:23], v4, s[8:11], s17 offen offset:2048")
    g("s_waitcnt vmcnt(4)")
    g("v_max_f32_dpp v24, v6, v6 quad_perm:[1,0,3,2] row_mask:0xf bank_mask:0xf")
    g("s_nop 1")
    g("v_max_f32_dpp v24, v24, v24 quad_perm:[2,3,0,1] row_mask:0xf bank_mask:0xf")
    g("s_nop 1")
    g("v_max_f32_dpp v24, v24, v24 row_half_mirror row_mask:0xf bank_mask:0xf")
    g("v_sub_f32 v25, v6, v24")
    g("v_mul_f32 v25, s20, v25")
    g("v_exp_f32 v25, v25")
    g("s_nop 0")
    g("v_mul_f32 v26, v25, v7")
    g("s_nop 1")
    g("v_add_f32_dpp v26, v26, v26 quad_perm:[1,0,3,2] row_mask:0xf bank_mask:0xf")
    g("s_nop 1")
    g("v_add_f32_dpp v26, v26, v26 quad_perm:[2,3,0,1] row_mask:0xf bank_mask:0xf")
    g("s_nop 1")
    g("v_add_f32_dpp v26, v26, v26 row_half_mirror row_mask:0xf bank_mask:0xf")
    g("v_rcp_f32 v26, v26")
    g("s_nop 0")
    g("v_mul_f32 v25, v25, v26")
    g("v_lshlrev_b32 v27, 2, v0")
    g("ds_write_b32 v27, v25")
    g("s_waitcnt lgkmcnt(0)")
    g("s_barrier")
    g("v_lshlrev_b32 v27, 4, v1")
    g("ds_read_b128 v[28:31], v27")
    g("s_waitcnt vmcnt(0) lgkmcnt(0)")
    for e in range(4):
        g(f"v_mul_f32 v{8+e}, v28, v{8+e}")
    for k in range(1, 4):
        for e in range(4):
            g(f"v_fmac_f32 v{8+e}, v{28+k}, v{8+4*k+e}")
    g("s_nop 1")
    for st in (4, 8):
        for e in range(4):
            g(f"v_add_f32_dpp v{8+e}, v{8+e}, v{8+e} row_ror:{st} row_mask:0xf bank_mask:0xf")
    g("s_nop 1")
    g("v_permlane32_swap_b32 v8, v10")
    g("v_permlane32_swap_b32 v9, v11")
    g("s_nop 1")
    g("v_add_f32 v8, v8, v10")
    g("v_add_f32 v9, v9, v11")
    g("s_nop 1")
    g("v_permlane16_swap_b32 v8, v9")
    g("s_nop 1")
    g("v_add_f32 v8, v8, v9")
    g("v_bfe_u32 v12, v0, 4, 2")
    g("v_lshl_add_u32 v12, v2, 2, v12")
    g("v_lshrrev_b32 v13, 6, v0")
    g("v_lshl_add_u32 v13, v13, 4, v12")
    g("v_lshlrev_b32 v13, 2, v13")
    g("ds_write_b32 v13, v8 offset:1024")
    g("s_waitcnt lgkmcnt(0)")
    g("s_barrier")
    g("v_cmp_gt_u32 vcc, 16, v0")
    g("s_and_saveexec_b64 s[22:23], vcc")
    g("s_cbranch_execz L_fin_end")
    g("v_lshlrev_b32 v13, 2, v0")
    for w in range(4):
        g(f"ds_read_b32 v{8+w}, v13 offset:{1024+w*64}")
    g("s_lshl_b32 s17, s2, 5")
    g("v_lshlrev_b32 v14, 1, v0")
    g("s_waitcnt lgkmcnt(0)")
    g("v_add_f32 v8, v8, v9")
    g("v_add_f32 v10, v10, v11")
    g("v_add_f32 v8, v8, v10")
    g("v_cvt_pk_bf16_f32 v8, v8, 0")
    g("buffer_store_short v8, v14, s[12:15], s17 offen")
    g.label("L_fin_end")
    g("s_endpgm")

    hdr = open(f"cdna_kernels/{NAME}.s.ref").read().split("\n")
    cm = [l for l in hdr if l.startswith(";") and "@launch" not in l]
    out = "\n".join(cm) + "\n"
    out += f"; @launch kernel={kn} grid=(256,1,1) block=(512,1,1) lds=32768\n"
    out += f"; @launch kernel={fn} grid=(64,1,1) block=(256,1,1) lds=2048\n"
    out += '.amdgcn_target "amdgcn-amd-amdhsa--gfx950"\n.text\n'
    out += g.text()
    out += '.section .rodata,"a"\n'
    for k, nv, ns in ((kn, 256, 102), (fn, 32, 32)):
        out += f""".p2align 6
.amdhsa_kernel {k}
  .amdhsa_next_free_vgpr {nv}
  .amdhsa_next_free_sgpr {ns}
  .amdhsa_accum_offset {nv}
  .amdhsa_group_segment_fixed_size 0
  .amdhsa_kernarg_size 104
  .amdhsa_user_sgpr_count 2
  .amdhsa_user_sgpr_kernarg_segment_ptr 1
  .amdhsa_system_sgpr_workgroup_id_x 1
.end_amdhsa_kernel
"""
    return out

if __name__ == "__main__":
    import argparse
    ap = argparse.ArgumentParser()
    ap.add_argument("-o", default=f"cdna_kernels/{NAME}.s")
    ap.add_argument("--no-nt", action="store_true")
    ap.add_argument("--ntw", action="store_true")
    a = ap.parse_args()
    open(a.o, "w").write(build(nt_kv=not a.no_nt, nt_w=a.ntw))
```

```python
import sys, math, struct

NAME = "concat_heads__sliding_block_cached__mha_block_cached__decode"

def f32bits(x):
    return struct.unpack("<I", struct.pack("<f", x))[0]

CSC = (128.0 ** -0.5) * math.log2(math.e)

class Gen:
    def __init__(self):
        self.lines = []
    def __call__(self, s=""):
        self.lines.append("    " + s)
    def label(self, s):
        self.lines.append(s + ":")
    def text(self):
        return "\n".join(self.lines) + "\n"

def final_kernel(g):
    fn = "attn_final_kernel"
    g.lines.append(f".globl {fn}")
    g.lines.append(".p2align 8")
    g.lines.append(f".type {fn},@function")
    g.label(fn)
    g("s_cmp_ge_u32 s2, 64")
    g("s_cbranch_scc1 L_fin_end")
    g("s_load_dwordx2 s[4:5], s[0:1], 80")
    g("s_load_dwordx2 s[6:7], s[0:1], 96")
    g("s_lshr_b32 s3, s2, 5")
    g("s_and_b32 s16, s2, 31")
    g("s_lshl_b32 s17, s3, 19")
    g("s_lshl_b32 s18, s16, 6")
    g("s_add_u32 s17, s17, s18")
    g("s_lshl_b32 s19, s3, 11")
    g("s_add_u32 s19, s19, 0x100000")
    g(f"s_mov_b32 s20, 0x{f32bits(CSC):08x}")
    g("v_lshrrev_b32 v1, 2, v0")
    g("v_and_b32 v2, 3, v0")
    g("v_lshlrev_b32 v3, 13, v1")
    g("v_lshl_add_u32 v3, v2, 4, v3")
    g("v_add_u32 v4, 4096, v3")
    g("v_lshlrev_b32 v5, 3, v0")
    g("s_waitcnt lgkmcnt(0)")
    g("s_mov_b32 s8, s6")
    g("s_mov_b32 s9, s7")
    g("s_mov_b32 s10, 0x200000")
    g("s_mov_b32 s11, 0x00020000")
    g("s_mov_b32 s12, s4")
    g("s_mov_b32 s13, s5")
    g("s_mov_b32 s14, 2048")
    g("s_mov_b32 s15, 0x00020000")
    g("buffer_load_dwordx2 v[6:7], v5, s[8:11], s19 offen")
    g("buffer_load_dwordx4 v[8:11], v3, s[8:11], s17 offen")
    g("buffer_load_dwordx4 v[12:15], v3, s[8:11], s17 offen offset:2048")
    g("buffer_load_dwordx4 v[16:19], v4, s[8:11], s17 offen")
    g("buffer_load_dwordx4 v[20:23], v4, s[8:11], s17 offen offset:2048")
    g("s_waitcnt vmcnt(4)")
    g("v_max_f32_dpp v24, v6, v6 quad_perm:[1,0,3,2] row_mask:0xf bank_mask:0xf")
    g("s_nop 1")
    g("v_max_f32_dpp v24, v24, v24 quad_perm:[2,3,0,1] row_mask:0xf bank_mask:0xf")
    g("s_nop 1")
    g("v_max_f32_dpp v24, v24, v24 row_half_mirror row_mask:0xf bank_mask:0xf")
    g("v_sub_f32 v25, v6, v24")
    g("v_mul_f32 v25, s20, v25")
    g("v_exp_f32 v25, v25")
    g("s_nop 0")
    g("v_mul_f32 v26, v25, v7")
    g("s_nop 1")
    g("v_add_f32_dpp v26, v26, v26 quad_perm:[1,0,3,2] row_mask:0xf bank_mask:0xf")
    g("s_nop 1")
    g("v_add_f32_dpp v26, v26, v26 quad_perm:[2,3,0,1] row_mask:0xf bank_mask:0xf")
    g("s_nop 1")
    g("v_add_f32_dpp v26, v26, v26 row_half_mirror row_mask:0xf bank_mask:0xf")
    g("v_rcp_f32 v26, v26")
    g("s_nop 0")
    g("v_mul_f32 v25, v25, v26")
    g("v_lshlrev_b32 v27, 2, v0")
    g("ds_write_b32 v27, v25")
    g("s_waitcnt lgkmcnt(0)")
    g("s_barrier")
    g("v_lshlrev_b32 v27, 4, v1")
    g("ds_read_b128 v[28:31], v27")
    g("s_waitcnt vmcnt(0) lgkmcnt(0)")
    for e in range(4):
        g(f"v_mul_f32 v{8+e}, v28, v{8+e}")
    for k in range(1, 4):
        for e in range(4):
            g(f"v_fmac_f32 v{8+e}, v{28+k}, v{8+4*k+e}")
    g("s_nop 1")
    for st in (4, 8):
        for e in range(4):
            g(f"v_add_f32_dpp v{8+e}, v{8+e}, v{8+e} row_ror:{st} row_mask:0xf bank_mask:0xf")
    g("s_nop 1")
    g("v_permlane32_swap_b32 v8, v10")
    g("v_permlane32_swap_b32 v9, v11")
    g("s_nop 1")
    g("v_add_f32 v8, v8, v10")
    g("v_add_f32 v9, v9, v11")
    g("s_nop 1")
    g("v_permlane16_swap_b32 v8, v9")
    g("s_nop 1")
    g("v_add_f32 v8, v8, v9")
    g("v_bfe_u32 v12, v0, 4, 2")
    g("v_lshl_add_u32 v12, v2, 2, v12")
    g("v_lshrrev_b32 v13, 6, v0")
    g("v_lshl_add_u32 v13, v13, 4, v12")
    g("v_lshlrev_b32 v13, 2, v13")
    g("ds_write_b32 v13, v8 offset:1024")
    g("s_waitcnt lgkmcnt(0)")
    g("s_barrier")
    g("v_cmp_gt_u32 vcc, 16, v0")
    g("s_and_saveexec_b64 s[22:23], vcc")
    g("s_cbranch_execz L_fin_end")
    g("v_lshlrev_b32 v13, 2, v0")
    for w in range(4):
        g(f"ds_read_b32 v{8+w}, v13 offset:{1024+w*64}")
    g("s_lshl_b32 s17, s2, 5")
    g("v_lshlrev_b32 v14, 1, v0")
    g("s_waitcnt lgkmcnt(0)")
    g("v_add_f32 v8, v8, v9")
    g("v_add_f32 v10, v10, v11")
    g("v_add_f32 v8, v8, v10")
    g("v_cvt_pk_bf16_f32 v8, v8, 0")
    g("buffer_store_short v8, v14, s[12:15], s17 offen")
    g.label("L_fin_end")
    g("s_endpgm")
    return fn

def build(NS=2, start="bar", nt_w=False, stamps=False, hmap=0):
    g = Gen()
    NTKV = " nt"
    NTW = " nt" if nt_w else ""
    def STAMP():
        if not stamps: return
        g("s_memrealtime s[42:43]")
        g("s_waitcnt lgkmcnt(0)")
        g("s_mov_b32 m0, s38"); g("s_nop 0")
        g("v_writelane_b32 v7, s42, m0")
        g("s_add_u32 s38, s38, 1")
    KA = 16
    sAx, sAk, sAv, sAwq, sAwo, sBx, sBk, sBv = [KA + 2 * i for i in range(8)]
    sBwq, sBwo = 32, 34
    sRet = 36
    sTgt = 39
    sWs = 40
    sH, sSP, sG, sIt, sT, sC, sPidx = 3, 4, 5, 6, 7, 8, 9
    so = [10, 11, 12, 13]
    sT2, sT3 = 14, 15
    SRD_BK, SRD_BV, SRD_AK, SRD_AV = 44, 48, 52, 56
    SRD_PK, SRD_PV = 60, 64
    SRD_W, SRD_X, SRD_WS = 68, 72, 76
    sOL, sOH = 80, 96
    sSave = 100
    sProb = 26
    vKV, vWQ, vXo = 1, 2, 3
    vZero = 4
    vQPw, vQPr = 5, 6
    vQ, vO, vM, vL = 8, 12, 20, 21
    vSv, vX = 22, 36
    vS, vP = 44, 48
    vT = 52
    KB = [64 + 32 * s for s in range(NS)]
    VB = [80 + 32 * s for s in range(NS)]
    R = 192
    L_QP, L_OP, L_ML, L_CNT, L_YP = 0, 8192, 16384, 16640, 20480
    TB = 32768
    n_it = 20 // NS
    itA0 = 8 // NS
    nA = 4 // NS
    WAITN = 8 * NS - 4

    def srd(dst, base, off_s=None, size=None):
        if off_s is not None:
            g(f"s_add_u32 s{dst}, s{base}, s{off_s}")
            g(f"s_addc_u32 s{dst+1}, s{base+1}, 0")
        else:
            g(f"s_mov_b32 s{dst}, s{base}")
            g(f"s_mov_b32 s{dst+1}, s{base+1}")
        g(f"s_mov_b32 s{dst+2}, {size}")
        g(f"s_mov_b32 s{dst+3}, 0x00020000")

    def tile_load_list(dst, srdreg, sof):
        return [f"buffer_load_dwordx4 v[{dst+4*i}:{dst+4*i+3}], v{vKV}, s[{srdreg}:{srdreg+3}], s{sof} offen offset:{i*1024}{NTKV}" for i in range(4)]

    def x_loads(xbase):
        srd(SRD_X, xbase, size=1024)
        g(f"buffer_load_dwordx4 v[{vX}:{vX+3}], v{vXo}, s[{SRD_X}:{SRD_X+3}], 0 offen")
        g(f"buffer_load_dwordx4 v[{vX+4}:{vX+7}], v{vXo}, s[{SRD_X}:{SRD_X+3}], 0 offen offset:16")

    def wq_loads(wbase, inter=None):
        g(f"s_lshl_b32 s{sT}, s{sH}, 8")
        g(f"s_add_u32 s{SRD_W}, s{wbase}, s{sT}")
        g(f"s_addc_u32 s{SRD_W+1}, s{wbase+1}, 0")
        g(f"s_sub_u32 s{SRD_W+2}, 0x400000, s{sT}")
        g(f"s_mov_b32 s{SRD_W+3}, 0x00020000")
        g(f"s_mov_b32 s{sT}, 0")
        for i in range(16):
            g(f"buffer_load_dwordx4 v[{R+4*i}:{R+4*i+3}], v{vWQ}, s[{SRD_W}:{SRD_W+3}], s{sT} offen{NTW}")
            if i < 15:
                g(f"s_add_u32 s{sT}, s{sT}, 0x2000")
            if inter:
                g(inter.pop(0))

    def wo_loads(wbase):
        g(f"s_lshl_b32 s{sT}, s{sH}, 17")
        g(f"s_add_u32 s{SRD_W}, s{wbase}, s{sT}")
        g(f"s_addc_u32 s{SRD_W+1}, s{wbase+1}, 0")
        g(f"s_mov_b32 s{SRD_W+2}, 0x20000")
        g(f"s_mov_b32 s{SRD_W+3}, 0x00020000")
        g(f"s_mov_b32 s{sT}, 0")
        for i in range(16):
            g(f"buffer_load_dwordx4 v[{R+4*i}:{R+4*i+3}], v{vKV}, s[{SRD_W}:{SRD_W+3}], s{sT} offen offset:{(i%4)*1024}{NTW}")
            if i % 4 == 3 and i < 15:
                g(f"s_add_u32 s{sT}, s{sT}, {TB}")

    def set_soffs(tile):
        for s in range(NS):
            g(f"s_mov_b32 s{so[s]}, {(tile+s)*TB}")

    def set_pf(k, v):
        g(f"s_mov_b64 s[{SRD_PK}:{SRD_PK+1}], s[{k}:{k+1}]")
        g(f"s_mov_b64 s[{SRD_PK+2}:{SRD_PK+3}], s[{k+2}:{k+3}]")
        g(f"s_mov_b64 s[{SRD_PV}:{SRD_PV+1}], s[{v}:{v+1}]")
        g(f"s_mov_b64 s[{SRD_PV+2}:{SRD_PV+3}], s[{v+2}:{v+3}]")

    def reduce_scatter8(a):
        g("s_nop 1")
        for e in range(4):
            g(f"v_permlane32_swap_b32 v{a+e}, v{a+e+4}")
        g("s_nop 1")
        for e in range(4):
            g(f"v_add_f32 v{a+e}, v{a+e}, v{a+e+4}")
        g("s_nop 1")
        for e in range(2):
            g(f"v_permlane16_swap_b32 v{a+e}, v{a+e+2}")
        g("s_nop 1")
        for e in range(2):
            g(f"v_add_f32 v{a+e}, v{a+e}, v{a+e+2}")

    def allreduce_rows(x, t1, op):
        g(f"v_mov_b32 v{t1}, v{x}")
        g("s_nop 1")
        g(f"v_permlane32_swap_b32 v{x}, v{t1}")
        g("s_nop 1")
        g(f"{op} v{x}, v{x}, v{t1}")
        g(f"v_mov_b32 v{t1}, v{x}")
        g("s_nop 1")
        g(f"v_permlane16_swap_b32 v{x}, v{t1}")
        g("s_nop 1")
        g(f"{op} v{x}, v{x}, v{t1}")

    def arrive(c):
        g("s_mov_b64 exec, 1")
        g(f"v_mov_b32 v{vT+11}, 1")
        g(f"ds_add_u32 v{vZero}, v{vT+11} offset:{L_CNT+4*c}")
        g("s_mov_b64 exec, -1")

    wl = [0]
    def wait_cnt(c, target):
        wl[0] += 1
        lab = f"L_w{wl[0]}"
        g.label(lab)
        g(f"ds_read_b32 v{vT+11}, v{vZero} offset:{L_CNT+4*c}")
        g("s_waitcnt lgkmcnt(0)")
        g(f"v_readfirstlane_b32 s{sT}, v{vT+11}")
        g("s_nop 3")
        g(f"s_cmp_lt_u32 s{sT}, {target}")
        g(f"s_cbranch_scc1 {lab}")

    def call(lab):
        g(f"s_call_b64 s[{sRet}:{sRet+1}], {lab}")

    kn = "attn_main_kernel"
    g.lines.append(f".globl {kn}")
    g.lines.append(".p2align 8")
    g.lines.append(f".type {kn},@function")
    g.label(kn)
    g("s_cmp_ge_u32 s2, 0x100")
    g("s_cbranch_scc1 L_main_end")
    if stamps: g("s_memrealtime s[42:43]")
    g(f"s_load_dwordx16 s[16:31], s[0:1], 0")
    g(f"s_load_dwordx8 s[32:39], s[0:1], 64")
    g(f"s_load_dwordx2 s[40:41], s[0:1], 96")
    g(f"s_and_b32 s{sG}, s2, 7")
    if hmap == 0:
        g(f"s_lshr_b32 s{sT}, s2, 3")
        g(f"s_and_b32 s{sT}, s{sT}, 3")
        g(f"s_lshr_b32 s{sSP}, s2, 5")
    elif hmap == 1:
        g(f"s_lshr_b32 s{sT}, s2, 3")
        g(f"s_add_u32 s{sT}, s{sT}, 1")
        g(f"s_and_b32 s{sT}, s{sT}, 3")
        g(f"s_lshr_b32 s{sSP}, s2, 5")
    else:
        g(f"s_lshr_b32 s{sT}, s2, 6")
        g(f"s_lshr_b32 s{sSP}, s2, 3")
        g(f"s_and_b32 s{sSP}, s{sSP}, 7")
    g(f"s_lshl_b32 s{sH}, s{sG}, 2")
    g(f"s_add_u32 s{sH}, s{sH}, s{sT}")
    g(f"s_lshl_b32 s{sPidx}, s{sH}, 3")
    g(f"s_add_u32 s{sPidx}, s{sPidx}, s{sSP}")
    g(f"s_mov_b32 s{sC}, 0x{f32bits(CSC):08x}")
    g(f"v_lshrrev_b32 v{vT}, 6, v0")
    g(f"v_and_b32 v{vT+1}, 63, v0")
    g(f"v_bfe_u32 v{vT+2}, v0, 4, 2")
    g(f"v_and_b32 v{vT+3}, 15, v0")
    g(f"v_lshlrev_b32 v{vKV}, 12, v{vT}")
    g(f"v_lshl_add_u32 v{vKV}, v{vT+1}, 4, v{vKV}")
    g(f"v_lshlrev_b32 v{vXo}, 6, v{vT}")
    g(f"v_lshl_add_u32 v{vXo}, v{vT+2}, 4, v{vXo}")
    g(f"v_lshlrev_b32 v{vWQ}, 13, v{vXo}")
    g(f"v_lshl_add_u32 v{vWQ}, v{vT+3}, 4, v{vWQ}")
    g(f"v_lshlrev_b32 v{vXo}, 1, v{vXo}")
    g(f"v_lshlrev_b32 v{vQPw}, 9, v{vT}")
    g(f"v_lshl_add_u32 v{vQPw}, v{vT+3}, 5, v{vQPw}")
    g(f"v_lshl_add_u32 v{vQPw}, v{vT+2}, 3, v{vQPw}")
    g(f"v_lshlrev_b32 v{vQPr}, 5, v{vT+3}")
    g(f"v_mov_b32 v{vZero}, 0")
    g("v_mov_b32 v7, 0")
    g(f"v_lshlrev_b32 v{vT+4}, 2, v{vT+3}")
    g(f"ds_write_b32 v{vT+4}, v{vZero} offset:{L_CNT}")
    g(f"s_lshl_b32 s{sT2}, s{sH}, 22")
    g(f"s_lshl_b32 s{sT3}, s{sSP}, 19")
    g(f"s_add_u32 s{sT2}, s{sT2}, s{sT3}")
    set_soffs(0)
    g("s_waitcnt lgkmcnt(0)")
    if stamps:
        g("s_mov_b32 s38, 0")
        g("s_mov_b32 m0, s38"); g("s_nop 0")
        g("v_writelane_b32 v7, s42, m0")
        g("s_add_u32 s38, s38, 1")
    STAMP()
    x_loads(sBx)
    srd(SRD_BK, sBk, off_s=sT2, size=0x80000)
    srd(SRD_BV, sBv, off_s=sT2, size=0x80000)
    tl = []
    for s in range(NS):
        tl += tile_load_list(KB[s], SRD_BK, so[s])
        tl += tile_load_list(VB[s], SRD_BV, so[s])
    if start == "inter":
        wq_loads(sBwq, inter=tl)
        nafter = len(tl) + 1
        for l in tl: g(l)
    else:
        wq_loads(sBwq)
        if start == "bar":
            g("s_barrier")
        for l in tl: g(l)
        nafter = 8 * NS
    g(f"s_lshl_b32 s{sT2}, s{sG}, 22")
    g(f"s_lshl_b32 s{sT3}, s{sSP}, 17")
    g(f"s_add_u32 s{sT2}, s{sT2}, s{sT3}")
    g(f"s_add_u32 s{sT2}, s{sT2}, {12288*256}")
    srd(SRD_AK, sAk, off_s=sT2, size=0x20000)
    srd(SRD_AV, sAv, off_s=sT2, size=0x20000)
    srd(SRD_WS, sWs, size=0x1000000)
    set_pf(SRD_BK, SRD_BV)
    set_soffs(NS)
    g(f"s_mov_b32 s{sIt}, 0")
    g(f"s_waitcnt vmcnt({nafter})")
    STAMP()
    call("L_QP")
    g("s_waitcnt lgkmcnt(0)")
    g("s_barrier")
    call("L_QC")
    x_loads(sAx)
    wq_loads(sAwq)

    g.label("L_loop")
    STAMP()
    for b in range(NS):
        K, V = KB[b], VB[b]
        g(f"s_waitcnt vmcnt({WAITN})")
        for e in range(4):
            for i in range(4):
                if e == 0:
                    g(f"v_dot2_f32_bf16 v{vS+i}, v{K+4*i}, v{vQ}, 0")
                else:
                    g(f"v_dot2c_f32_bf16 v{vS+i}, v{K+4*i+e}, v{vQ+e}")
        for l in tile_load_list(K, SRD_PK, so[b]): g(l)
        for st in (8, 4, 2, 1):
            for i in range(4):
                g(f"v_add_f32_dpp v{vS+i}, v{vS+i}, v{vS+i} row_ror:{st} row_mask:0xf bank_mask:0xf")
        mn, nmc, al = vT, vT + 1, vT + 2
        g(f"v_max3_f32 v{mn}, v{vS}, v{vS+1}, v{vM}")
        g(f"v_max3_f32 v{mn}, v{mn}, v{vS+2}, v{vS+3}")
        g(f"v_mul_f32 v{nmc}, s{sC}, v{mn}")
        g(f"v_fma_f32 v{al}, v{vM}, s{sC}, -v{nmc}")
        for i in range(4):
            g(f"v_fma_f32 v{vS+i}, v{vS+i}, s{sC}, -v{nmc}")
        g(f"v_exp_f32 v{al}, v{al}")
        for i in range(4):
            g(f"v_exp_f32 v{vS+i}, v{vS+i}")
        g(f"v_mov_b32 v{vM}, v{mn}")
        g(f"v_fma_f32 v{vL}, v{vL}, v{al}, v{vS}")
        for e in range(8):
            g(f"v_mul_f32 v{vO+e}, v{vO+e}, v{al}")
        for i in range(1, 4):
            g(f"v_add_f32 v{vL}, v{vL}, v{vS+i}")
        for i in range(4):
            g(f"v_cvt_pk_bf16_f32 v{vP+i}, v{vS+i}, 0")
        for i in range(4):
            g(f"v_lshlrev_b32 v{vS+i}, 16, v{vP+i}")
        g(f"s_waitcnt vmcnt({WAITN})")
        for i in range(4):
            for e in range(4):
                g(f"v_dot2c_f32_bf16 v{vO+2*e}, v{V+4*i+e}, v{vP+i}")
                g(f"v_dot2c_f32_bf16 v{vO+2*e+1}, v{V+4*i+e}, v{vS+i}")
        for l in tile_load_list(V, SRD_PV, so[b]): g(l)
    g(f"s_add_u32 s{sIt}, s{sIt}, 1")
    cQP = max(1, 2 // (NS // 2)) if NS == 2 else 1
    cQC = itA0
    cO1 = itA0 + nA
    cO2 = cO1 + (n_it - cO1) // 2
    def stream_of(it):
        if it < itA0: return ("B", it * NS)
        if it < itA0 + nA: return ("A", (it - itA0) * NS)
        return ("B", (it - nA) * NS)
    special = []
    for c in range(1, n_it + 1):
        prev = stream_of(c)
        nxt = stream_of(c + 1)
        if c in (cQP, cQC, cO1, cO2, n_it) or prev[0] != nxt[0]:
            special.append(c)
    for c in special:
        g(f"s_cmp_eq_u32 s{sIt}, {c}")
        g(f"s_cbranch_scc1 L_T{c}")
    for s in range(NS):
        g(f"s_add_u32 s{so[s]}, s{so[s]}, {NS*TB}")
    g("s_branch L_loop")
    for c in special:
        g.label(f"L_T{c}")
        if c == n_it:
            STAMP()
            g(f"s_mov_b32 s{sProb}, 1")
            call("L_O1")
            arrive(1)
            wait_cnt(1, 16)
            call("L_O2")
            g("s_waitcnt lgkmcnt(0)")
            arrive(2)
            wait_cnt(2, 8)
            t1 = vT
            g(f"v_lshlrev_b32 v{t1}, 2, v0")
            for p in range(2):
                for w in range(8):
                    g(f"ds_read_b32 v{64+8*p+w}, v{t1} offset:{L_YP+p*16384+w*2048}")
            g(f"s_lshl_b32 s{sT2}, s{sPidx}, 11")
            g(f"s_add_u32 s{sT3}, s{sT2}, 0x80000")
            g("s_waitcnt lgkmcnt(0)")
            for p in range(2):
                for st in (4, 2, 1):
                    for k in range(st):
                        g(f"v_add_f32 v{64+8*p+k}, v{64+8*p+k}, v{64+8*p+k+st}")
            g(f"buffer_store_dword v64, v{t1}, s[{SRD_WS}:{SRD_WS+3}], s{sT2} offen")
            g(f"buffer_store_dword v72, v{t1}, s[{SRD_WS}:{SRD_WS+3}], s{sT3} offen")
            g("s_branch L_main_fin")
            continue
        if c == cQP:
            g(f"s_waitcnt vmcnt({8*NS})")
            call("L_QP")
            arrive(0)
        if c == cQC:
            g("s_nop 3")
            for k in range(14):
                g(f"v_mov_b32 v{vSv+k}, v{vQ+k}")
            wait_cnt(0, 8)
            call("L_QC")
            wo_loads(sAwo)
        if c == cO1:
            g(f"s_mov_b32 s{sProb}, 0")
            call("L_O1")
            arrive(1)
            for k in range(14):
                g(f"v_mov_b32 v{vQ+k}, v{vSv+k}")
        if c == cO2:
            g("s_nop 3")
            for k in range(14):
                g(f"v_mov_b32 v{vSv+k}, v{vQ+k}")
            wait_cnt(1, 8)
            call("L_O2")
            wo_loads(sBwo)
            for k in range(14):
                g(f"v_mov_b32 v{vQ+k}, v{vSv+k}")
        prev = stream_of(c)
        nxt = stream_of(c + 1)
        if prev[0] != nxt[0]:
            if nxt[0] == "A": set_pf(SRD_AK, SRD_AV)
            else: set_pf(SRD_BK, SRD_BV)
        set_soffs(nxt[1])
        g("s_branch L_loop")

    g.label("L_QP")
    acc = vS
    op = vT
    for j in range(8):
        g(f"v_and_b32 v{op}, 0xffff, v{vX+j}")
        g(f"v_lshlrev_b32 v{op+1}, 16, v{vX+j}")
        g(f"v_lshrrev_b32 v{op+2}, 16, v{vX+j}")
        g(f"v_and_b32 v{op+3}, 0xffff0000, v{vX+j}")
        for half in range(2):
            row = 2 * j + half
            for e in range(4):
                w = R + row * 4 + e
                if row == 0:
                    g(f"v_dot2_f32_bf16 v{acc+2*e}, v{w}, v{op+2*half}, 0")
                    g(f"v_dot2_f32_bf16 v{acc+2*e+1}, v{w}, v{op+2*half+1}, 0")
                else:
                    g(f"v_dot2c_f32_bf16 v{acc+2*e}, v{w}, v{op+2*half}")
                    g(f"v_dot2c_f32_bf16 v{acc+2*e+1}, v{w}, v{op+2*half+1}")
    g("s_nop 3")
    reduce_scatter8(acc)
    g(f"ds_write_b64 v{vQPw}, v[{acc}:{acc+1}]")
    g(f"v_add_u32 v{vQPw}, 4096, v{vQPw}")
    g(f"s_setpc_b64 s[{sRet}:{sRet+1}]")

    g.label("L_QC")
    for w in range(8):
        g(f"ds_read_b128 v[{R+8*w}:{R+8*w+3}], v{vQPr} offset:{w*512}")
        g(f"ds_read_b128 v[{R+8*w+4}:{R+8*w+7}], v{vQPr} offset:{w*512+16}")
    g("s_waitcnt lgkmcnt(0)")
    for st in (32, 16, 8):
        for k in range(st):
            g(f"v_add_f32 v{R+k}, v{R+k}, v{R+k+st}")
    for e in range(4):
        g(f"v_cvt_pk_bf16_f32 v{vQ+e}, v{R+2*e}, v{R+2*e+1}")
    g(f"v_mov_b32 v{vM}, 0xff800000")
    g(f"v_mov_b32 v{vL}, 0")
    for e in range(8):
        g(f"v_mov_b32 v{vO+e}, 0")
    g(f"v_add_u32 v{vQPr}, 4096, v{vQPr}")
    g(f"s_setpc_b64 s[{sRet}:{sRet+1}]")

    g.label("L_O1")
    g("s_nop 3")
    mw, f, t1 = vT, vT + 1, vT + 2
    g(f"v_mov_b32 v{mw}, v{vM}")
    allreduce_rows(mw, t1, "v_max_f32")
    g(f"v_sub_f32 v{f}, v{vM}, v{mw}")
    g(f"v_mul_f32 v{f}, s{sC}, v{f}")
    g(f"v_exp_f32 v{f}, v{f}")
    g("s_nop 0")
    g(f"v_mul_f32 v{vL}, v{vL}, v{f}")
    for e in range(8):
        g(f"v_mul_f32 v{vO+e}, v{vO+e}, v{f}")
    allreduce_rows(vL, t1, "v_add_f32")
    reduce_scatter8(vO)
    g(f"s_lshl_b32 s{sT}, s{sProb}, 12")
    g(f"v_lshrrev_b32 v{t1+1}, 6, v0")
    g(f"v_lshlrev_b32 v{t1}, 9, v{t1+1}")
    g(f"v_and_b32 v{t1+2}, 15, v0")
    g(f"v_lshl_add_u32 v{t1}, v{t1+2}, 5, v{t1}")
    g(f"v_bfe_u32 v{t1+2}, v0, 4, 2")
    g(f"v_lshl_add_u32 v{t1}, v{t1+2}, 3, v{t1}")
    g(f"v_add_u32 v{t1}, s{sT}, v{t1}")
    g(f"ds_write_b64 v{t1}, v[{vO}:{vO+1}] offset:{L_OP}")
    g(f"s_lshl_b32 s{sT}, s{sProb}, 6")
    g(f"v_lshl_add_u32 v{t1}, v{t1+1}, 3, s{sT}")
    g(f"v_mov_b32 v{f}, v{vL}")
    g(f"ds_write_b64 v{t1}, v[{mw}:{f}] offset:{L_ML}")
    g(f"s_setpc_b64 s[{sRet}:{sRet+1}]")

    g.label("L_O2")
    ML = vS
    a1, a2 = vT + 8, vT + 9
    g(f"s_lshl_b32 s{sT}, s{sProb}, 6")
    g(f"v_mov_b32 v{a1}, s{sT}")
    for k in range(4):
        g(f"ds_read_b128 v[{ML+4*k}:{ML+4*k+3}], v{a1} offset:{L_ML+16*k}")
    g(f"v_lshrrev_b32 v{a1}, 6, v0")
    g(f"v_lshlrev_b32 v{a1}, 2, v{a1}")
    g(f"v_and_b32 v{a2}, 3, v0")
    g(f"v_add_u32 v{a1}, v{a1}, v{a2}")
    g(f"v_bfe_u32 v{a2}, v0, 2, 2")
    g(f"v_lshl_add_u32 v{a1}, v{a2}, 5, v{a1}")
    g(f"s_lshl_b32 s{sT}, s{sProb}, 12")
    g(f"v_lshl_add_u32 v{a1}, v{a1}, 2, s{sT}")
    for w in range(8):
        g(f"ds_read_b32 v{vO+w}, v{a1} offset:{L_OP+w*512}")
    g("s_waitcnt lgkmcnt(0)")
    Mx = vM
    g(f"v_max3_f32 v{Mx}, v{ML}, v{ML+2}, v{ML+4}")
    g(f"v_max3_f32 v{Mx}, v{Mx}, v{ML+6}, v{ML+8}")
    g(f"v_max3_f32 v{Mx}, v{Mx}, v{ML+10}, v{ML+12}")
    g(f"v_max_f32 v{Mx}, v{Mx}, v{ML+14}")
    for w in range(8):
        g(f"v_sub_f32 v{ML+2*w}, v{ML+2*w}, v{Mx}")
    for w in range(8):
        g(f"v_mul_f32 v{ML+2*w}, s{sC}, v{ML+2*w}")
    for w in range(8):
        g(f"v_exp_f32 v{ML+2*w}, v{ML+2*w}")
    g("s_nop 0")
    g(f"v_mul_f32 v{vL}, v{ML}, v{ML+1}")
    g(f"v_mul_f32 v{a2}, v{ML}, v{vO}")
    for w in range(1, 8):
        g(f"v_fmac_f32 v{vL}, v{ML+2*w}, v{ML+2*w+1}")
        g(f"v_fmac_f32 v{a2}, v{ML+2*w}, v{vO+w}")
    g(f"v_cvt_pk_bf16_f32 v{a2}, v{a2}, 0")
    g("s_nop 1")
    for i in range(16):
        g(f"v_readlane_b32 s{sOL+i}, v{a2}, {i}")
    g(f"s_lshl_b32 s{sT}, s{sProb}, 8")
    g(f"s_add_u32 s{sT}, s{sT}, s{sPidx}")
    g(f"s_lshl_b32 s{sT}, s{sT}, 3")
    g(f"s_add_u32 s{sT}, s{sT}, 0x100000")
    g(f"s_waitcnt vmcnt({8*NS})")
    g(f"v_cmp_eq_u32 vcc, 0, v0")
    g(f"s_and_saveexec_b64 s[{sSave}:{sSave+1}], vcc")
    g("s_cbranch_execz L_O_noml")
    g(f"buffer_store_dwordx2 v[{vM}:{vL}], v{vZero}, s[{SRD_WS}:{SRD_WS+3}], s{sT} offen")
    g.label("L_O_noml")
    g(f"s_mov_b64 exec, s[{sSave}:{sSave+1}]")
    y = vO
    for i in range(16):
        g(f"s_lshl_b32 s{sOH+(i%4)}, s{sOL+i}, 16")
        for e in range(4):
            w = R + 4 * i + e
            if i == 0:
                g(f"v_dot2_f32_bf16 v{y+2*e}, v{w}, s{sOL+i}, 0")
                g(f"v_dot2_f32_bf16 v{y+2*e+1}, v{w}, s{sOH+(i%4)}, 0")
            else:
                g(f"v_dot2c_f32_bf16 v{y+2*e}, s{sOL+i}, v{w}")
                g(f"v_dot2c_f32_bf16 v{y+2*e+1}, s{sOH+(i%4)}, v{w}")
    g(f"s_lshl_b32 s{sT}, s{sProb}, 14")
    g(f"v_lshl_add_u32 v{a1}, v0, 5, s{sT}")
    g("s_nop 1")
    g(f"ds_write_b128 v{a1}, v[{y}:{y+3}] offset:{L_YP}")
    g(f"ds_write_b128 v{a1}, v[{y+4}:{y+7}] offset:{L_YP+16}")
    g(f"s_setpc_b64 s[{sRet}:{sRet+1}]")

    g.label("L_main_fin")
    if stamps:
        STAMP()
        g("v_lshrrev_b32 v8, 6, v0")
        g("v_and_b32 v9, 63, v0")
        g("v_lshlrev_b32 v8, 6, v8")
        g("v_lshl_add_u32 v8, v9, 2, v8")
        g("s_lshl_b32 s39, s2, 9")
        g("s_add_u32 s39, s39, 0x800000")
        g("v_cmp_gt_u32 vcc, 16, v9")
        g("s_and_saveexec_b64 s[100:101], vcc")
        g(f"buffer_store_dword v7, v8, s[{SRD_WS}:{SRD_WS+3}], s39 offen")
    g.label("L_main_end")
    g("s_endpgm")

    fn = final_kernel(g)

    hdr = open(f"cdna_kernels/{NAME}.s.ref").read().split("\n")
    cm = [l for l in hdr if l.startswith(";") and "@launch" not in l]
    out = "\n".join(cm) + "\n"
    out += f"; @launch kernel={kn} grid=(256,1,1) block=(512,1,1) lds=53248\n"
    out += f"; @launch kernel={fn} grid=(64,1,1) block=(256,1,1) lds=2048\n"
    out += '.amdgcn_target "amdgcn-amd-amdhsa--gfx950"\n.text\n'
    out += g.text()
    out += '.section .rodata,"a"\n'
    for k, nv, ns in ((kn, 256, 102), (fn, 32, 32)):
        out += f""".p2align 6
.amdhsa_kernel {k}
  .amdhsa_next_free_vgpr {nv}
  .amdhsa_next_free_sgpr {ns}
  .amdhsa_accum_offset {nv}
  .amdhsa_group_segment_fixed_size 0
  .amdhsa_kernarg_size 104
  .amdhsa_user_sgpr_count 2
  .amdhsa_user_sgpr_kernarg_segment_ptr 1
  .amdhsa_system_sgpr_workgroup_id_x 1
.end_amdhsa_kernel
"""
    return out

if __name__ == "__main__":
    import argparse
    ap = argparse.ArgumentParser()
    ap.add_argument("-o", default=f"cdna_kernels/{NAME}.s")
    ap.add_argument("--ns", type=int, default=2)
    ap.add_argument("--start", default="bar")
    ap.add_argument("--ntw", action="store_true")
    ap.add_argument("--stamps", action="store_true")
    ap.add_argument("--hmap", type=int, default=0)
    a = ap.parse_args()
    open(a.o, "w").write(build(NS=a.ns, start=a.start, nt_w=a.ntw, stamps=a.stamps, hmap=a.hmap))
```

```python
import sys, math, struct
from gen2 import final_kernel, Gen, f32bits, CSC, NAME

QP_OFF = 0x200000

def q_kernel(g, warmA=True, warmB=0):
    kn = "attn_q_kernel"
    g.lines.append(f".globl {kn}")
    g.lines.append(".p2align 8")
    g.lines.append(f".type {kn},@function")
    g.label(kn)
    g("s_cmp_ge_u32 s2, 0x100")
    g("s_cbranch_scc1 L_q_end")
    g("s_load_dwordx16 s[16:31], s[0:1], 0")
    g("s_load_dwordx2 s[32:33], s[0:1], 64")
    g("s_load_dwordx2 s[40:41], s[0:1], 96")
    g("s_and_b32 s3, s2, 7")
    g("s_lshr_b32 s4, s2, 3")
    g("s_lshr_b32 s5, s4, 4")
    g("s_and_b32 s6, s4, 15")
    g("v_lshrrev_b32 v1, 6, v0")
    g("v_and_b32 v2, 63, v0")
    g("v_lshlrev_b32 v3, 15, v1")
    g("v_lshl_add_u32 v3, v2, 4, v3")
    g("v_lshlrev_b32 v4, 3, v1")
    g("v_lshlrev_b32 v5, 12, v1")
    g("v_lshl_add_u32 v5, v2, 4, v5")
    g("s_lshl_b32 s7, s6, 18")
    g("s_lshl_b32 s8, s3, 10")
    g("s_add_u32 s7, s7, s8")
    g("s_lshl_b32 s9, s6, 6")
    g("s_waitcnt lgkmcnt(0)")
    g("s_cmp_eq_u32 s5, 0")
    g("s_cselect_b64 s[44:45], s[22:23], s[32:33]")
    g("s_mov_b32 s46, 0x400000")
    g("s_mov_b32 s47, 0x00020000")
    g("s_cselect_b64 s[48:49], s[16:17], s[26:27]")
    g("s_mov_b32 s50, 1024")
    g("s_mov_b32 s51, 0x00020000")
    g("buffer_load_dwordx2 v[6:7], v4, s[48:51], s9 offen")
    for i in range(4):
        g(f"buffer_load_dwordx4 v[{8+4*i}:{11+4*i}], v3, s[44:47], s7 offen")
        if i < 3: g("s_add_u32 s7, s7, 0x2000")
    nw = 0
    if warmA:
        g("s_lshl_b32 s10, s3, 22")
        g("s_lshl_b32 s11, s4, 15")
        g("s_add_u32 s10, s10, s11")
        g(f"s_add_u32 s10, s10, {12288*256}")
        for (b, d) in ((18, 52), (20, 56)):
            g(f"s_add_u32 s{d}, s{b}, s10")
            g(f"s_addc_u32 s{d+1}, s{b+1}, 0")
            g(f"s_mov_b32 s{d+2}, 0x8000")
            g(f"s_mov_b32 s{d+3}, 0x00020000")
        for d in (52, 56):
            for i in range(4):
                g(f"buffer_load_dwordx4 v[{32+4*(nw%8)}:{35+4*(nw%8)}], v5, s[{d}:{d+3}], 0 offen offset:{i*1024}")
                nw += 1
    if warmB:
        g("s_and_b32 s12, s4, 3")
        g("s_lshl_b32 s13, s3, 2")
        g("s_add_u32 s12, s12, s13")
        g("s_lshr_b32 s13, s2, 5")
        g("s_lshl_b32 s12, s12, 22")
        g("s_lshl_b32 s13, s13, 19")
        g("s_add_u32 s12, s12, s13")
        for (b, d) in ((28, 60), (30, 64)):
            g(f"s_add_u32 s{d}, s{b}, s12")
            g(f"s_addc_u32 s{d+1}, s{b+1}, 0")
            g(f"s_mov_b32 s{d+2}, 0x80000")
            g(f"s_mov_b32 s{d+3}, 0x00020000")
        for t in range(warmB):
            g(f"s_mov_b32 s12, {t*32768}")
            for d in (60, 64):
                for i in range(4):
                    g(f"buffer_load_dwordx4 v[{32+4*(nw%8)}:{35+4*(nw%8)}], v5, s[{d}:{d+3}], s12 offen offset:{i*1024}")
                    nw += 1
    g("s_mov_b32 s68, s40")
    g("s_mov_b32 s69, s41")
    g("s_mov_b32 s70, 0x1000000")
    g("s_mov_b32 s71, 0x00020000")
    g(f"s_waitcnt vmcnt({nw})")
    for j in range(2):
        g(f"v_and_b32 v24, 0xffff, v{6+j}")
        g(f"v_lshlrev_b32 v25, 16, v{6+j}")
        g(f"v_lshrrev_b32 v26, 16, v{6+j}")
        g(f"v_and_b32 v27, 0xffff0000, v{6+j}")
        for half in range(2):
            row = 2 * j + half
            for e in range(4):
                w = 8 + row * 4 + e
                if row == 0:
                    g(f"v_dot2_f32_bf16 v{64+2*e}, v{w}, v{24+2*half}, 0")
                    g(f"v_dot2_f32_bf16 v{64+2*e+1}, v{w}, v{24+2*half+1}, 0")
                else:
                    g(f"v_dot2c_f32_bf16 v{64+2*e}, v{w}, v{24+2*half}")
                    g(f"v_dot2c_f32_bf16 v{64+2*e+1}, v{w}, v{24+2*half+1}")
    g("v_lshlrev_b32 v28, 5, v0")
    g("s_nop 2")
    g("ds_write_b128 v28, v[64:67]")
    g("ds_write_b128 v28, v[68:71] offset:16")
    g("s_waitcnt lgkmcnt(0)")
    g("s_barrier")
    g("v_lshlrev_b32 v28, 2, v0")
    for w in range(8):
        g(f"ds_read_b32 v{64+w}, v28 offset:{w*2048}")
    g("s_lshl_b32 s7, s5, 18")
    g("s_lshl_b32 s8, s6, 14")
    g("s_add_u32 s7, s7, s8")
    g("s_lshl_b32 s8, s3, 11")
    g("s_add_u32 s7, s7, s8")
    g(f"s_add_u32 s7, s7, {QP_OFF}")
    g("s_waitcnt lgkmcnt(0)")
    for st in (4, 2, 1):
        for k in range(st):
            g(f"v_add_f32 v{64+k}, v{64+k}, v{64+k+st}")
    g("buffer_store_dword v64, v28, s[68:71], s7 offen")
    g.label("L_q_end")
    g("s_endpgm")
    return kn

def build(stamps=False, sched=None, ntA=False, D=6, pollmax=40000, P0=1):
    g = Gen()
    NS = 2
    NTB = " nt"
    NTA = " nt" if ntA else ""
    def STAMP():
        if not stamps: return
        g("s_memrealtime s[42:43]")
        g("s_waitcnt lgkmcnt(0)")
        g("s_mov_b32 m0, s38"); g("s_nop 0")
        g("v_writelane_b32 v7, s42, m0")
        g("s_add_u32 s38, s38, 1")
    KA = 16
    sAx, sAk, sAv, sAwq, sAwo, sBx, sBk, sBv = [KA + 2 * i for i in range(8)]
    sBwq, sBwo = 32, 34
    sRet = 36
    sWs = 40
    sH, sSP, sG, sIt, sT, sC, sPidx = 3, 4, 5, 6, 7, 8, 9
    so = [10, 11]
    sT2, sT3 = 14, 15
    sProb = 12
    SRD_BK, SRD_BV, SRD_AK, SRD_AV = 44, 48, 52, 56
    SRD_PK, SRD_PV = 60, 64
    SRD_W, SRD_WS = 68, 76
    sOL, sOH = 80, 96
    sSave = 100
    vKV = 1
    vZero, vOne = 4, 5
    vQPr = 6
    STB, STA = 8, 22
    vQ, vO, vM, vL = 8, 12, 20, 21
    vS, vP = 44, 48
    vT = 52
    KB = [64 + 32 * i for i in range(6)]
    VB = [80 + 32 * i for i in range(6)]
    R, R2 = 128, 192
    L_QP, L_OP, L_ML, L_CNT, L_YP = 0, 8192, 16384, 16640, 20480
    TB = 32768
    WAITN = 12

    def srd(dst, base, off_s=None, size=None):
        if off_s is not None:
            g(f"s_add_u32 s{dst}, s{base}, s{off_s}")
            g(f"s_addc_u32 s{dst+1}, s{base+1}, 0")
        else:
            g(f"s_mov_b32 s{dst}, s{base}")
            g(f"s_mov_b32 s{dst+1}, s{base+1}")
        g(f"s_mov_b32 s{dst+2}, {size}")
        g(f"s_mov_b32 s{dst+3}, 0x00020000")

    def tile_loads(dst, srdreg, sof, flag):
        for i in range(4):
            g(f"buffer_load_dwordx4 v[{dst+4*i}:{dst+4*i+3}], v{vKV}, s[{srdreg}:{srdreg+3}], s{sof} offen offset:{i*1024}{flag}")

    def wo_loads(wbase, RD):
        g(f"s_lshl_b32 s{sT}, s{sH}, 17")
        g(f"s_add_u32 s{SRD_W}, s{wbase}, s{sT}")
        g(f"s_addc_u32 s{SRD_W+1}, s{wbase+1}, 0")
        g(f"s_mov_b32 s{SRD_W+2}, 0x20000")
        g(f"s_mov_b32 s{SRD_W+3}, 0x00020000")
        g(f"s_mov_b32 s{sT}, 0")
        for i in range(16):
            g(f"buffer_load_dwordx4 v[{RD+4*i}:{RD+4*i+3}], v{vKV}, s[{SRD_W}:{SRD_W+3}], s{sT} offen offset:{(i%4)*1024}")
            if i % 4 == 3 and i < 15:
                g(f"s_add_u32 s{sT}, s{sT}, {TB}")

    def set_pf(k, v):
        g(f"s_mov_b64 s[{SRD_PK}:{SRD_PK+1}], s[{k}:{k+1}]")
        g(f"s_mov_b64 s[{SRD_PK+2}:{SRD_PK+3}], s[{k+2}:{k+3}]")
        g(f"s_mov_b64 s[{SRD_PV}:{SRD_PV+1}], s[{v}:{v+1}]")
        g(f"s_mov_b64 s[{SRD_PV+2}:{SRD_PV+3}], s[{v+2}:{v+3}]")

    def reduce_scatter8(a):
        g("s_nop 1")
        for e in range(4):
            g(f"v_permlane32_swap_b32 v{a+e}, v{a+e+4}")
        g("s_nop 1")
        for e in range(4):
            g(f"v_add_f32 v{a+e}, v{a+e}, v{a+e+4}")
        g("s_nop 1")
        for e in range(2):
            g(f"v_permlane16_swap_b32 v{a+e}, v{a+e+2}")
        g("s_nop 1")
        for e in range(2):
            g(f"v_add_f32 v{a+e}, v{a+e}, v{a+e+2}")

    def allreduce_rows(x, t1, op):
        g(f"v_mov_b32 v{t1}, v{x}")
        g("s_nop 1")
        g(f"v_permlane32_swap_b32 v{x}, v{t1}")
        g("s_nop 1")
        g(f"{op} v{x}, v{x}, v{t1}")
        g(f"v_mov_b32 v{t1}, v{x}")
        g("s_nop 1")
        g(f"v_permlane16_swap_b32 v{x}, v{t1}")
        g("s_nop 1")
        g(f"{op} v{x}, v{x}, v{t1}")

    def arrive(c):
        g("s_mov_b64 exec, 1")
        g(f"ds_add_u32 v{vZero}, v{vOne} offset:{L_CNT+4*c}")
        g("s_mov_b64 exec, -1")

    wl = [0]
    def wait_cnt(c, target):
        wl[0] += 1
        lab = f"L_w{wl[0]}"
        g.label(lab)
        g(f"ds_read_b32 v{vT+11}, v{vZero} offset:{L_CNT+4*c}")
        g("s_waitcnt lgkmcnt(0)")
        g(f"v_readfirstlane_b32 s{sT}, v{vT+11}")
        g("s_nop 3")
        g(f"s_cmp_lt_u32 s{sT}, {target}")
        g(f"s_cbranch_scc1 {lab}")

    def call(lab):
        g(f"s_call_b64 s[{sRet}:{sRet+1}], {lab}")

    def body(b, ST, pk, pv, flag, w1=12, w2=12):
        K, V = KB[b], VB[b]
        O_, M_, L_ = ST + 4, ST + 12, ST + 13
        g(f"s_waitcnt vmcnt({w1})")
        for e in range(4):
            for i in range(4):
                if e == 0:
                    g(f"v_dot2_f32_bf16 v{vS+i}, v{K+4*i}, v{ST}, 0")
                else:
                    g(f"v_dot2c_f32_bf16 v{vS+i}, v{K+4*i+e}, v{ST+e}")
        if pk is not None: tile_loads(K, pk, so[b], flag)
        else: g("s_nop 2")
        for st in (8, 4, 2, 1):
            for i in range(4):
                g(f"v_add_f32_dpp v{vS+i}, v{vS+i}, v{vS+i} row_ror:{st} row_mask:0xf bank_mask:0xf")
        mn, nmc, al = vT, vT + 1, vT + 2
        g(f"v_max3_f32 v{mn}, v{vS}, v{vS+1}, v{M_}")
        g(f"v_max3_f32 v{mn}, v{mn}, v{vS+2}, v{vS+3}")
        g(f"v_mul_f32 v{nmc}, s{sC}, v{mn}")
        g(f"v_fma_f32 v{al}, v{M_}, s{sC}, -v{nmc}")
        for i in range(4):
            g(f"v_fma_f32 v{vS+i}, v{vS+i}, s{sC}, -v{nmc}")
        g(f"v_exp_f32 v{al}, v{al}")
        for i in range(4):
            g(f"v_exp_f32 v{vS+i}, v{vS+i}")
        g(f"v_mov_b32 v{M_}, v{mn}")
        g(f"v_fma_f32 v{L_}, v{L_}, v{al}, v{vS}")
        for e in range(8):
            g(f"v_mul_f32 v{O_+e}, v{O_+e}, v{al}")
        for i in range(1, 4):
            g(f"v_add_f32 v{L_}, v{L_}, v{vS+i}")
        for i in range(4):
            g(f"v_cvt_pk_bf16_f32 v{vP+i}, v{vS+i}, 0")
        for i in range(4):
            g(f"v_lshlrev_b32 v{vS+i}, 16, v{vP+i}")
        g(f"s_waitcnt vmcnt({w2})")
        for i in range(4):
            for e in range(4):
                g(f"v_dot2c_f32_bf16 v{O_+2*e}, v{V+4*i+e}, v{vP+i}")
                g(f"v_dot2c_f32_bf16 v{O_+2*e+1}, v{V+4*i+e}, v{vS+i}")
        if pv is not None: tile_loads(V, pv, so[b], flag)
        else: g("s_nop 2")

    kn = "attn_main_kernel"
    g.lines.append(f".globl {kn}")
    g.lines.append(".p2align 8")
    g.lines.append(f".type {kn},@function")
    g.label(kn)
    g("s_cmp_ge_u32 s2, 0x100")
    g("s_cbranch_scc1 L_main_end")
    if stamps: g("s_memrealtime s[42:43]")
    g(f"s_load_dwordx16 s[16:31], s[0:1], 0")
    g(f"s_load_dwordx8 s[32:39], s[0:1], 64")
    g(f"s_load_dwordx2 s[40:41], s[0:1], 96")
    g(f"s_and_b32 s{sG}, s2, 7")
    g(f"s_lshr_b32 s{sT}, s2, 3")
    g(f"s_and_b32 s{sT}, s{sT}, 3")
    g(f"s_lshr_b32 s{sSP}, s2, 5")
    g(f"s_lshl_b32 s{sH}, s{sG}, 2")
    g(f"s_add_u32 s{sH}, s{sH}, s{sT}")
    g(f"s_lshl_b32 s{sPidx}, s{sH}, 3")
    g(f"s_add_u32 s{sPidx}, s{sPidx}, s{sSP}")
    g(f"s_mov_b32 s{sC}, 0x{f32bits(CSC):08x}")
    L_QS, L_Q = 20480, 0
    SRD_X, SRD_DBG = 72, 60
    sW, sMat, sRg = 13, 39, 37
    sNon = 98
    g(f"v_lshrrev_b32 v{vT}, 6, v0")
    g(f"v_and_b32 v{vT+1}, 63, v0")
    g(f"v_bfe_u32 v{vT+2}, v0, 4, 2")
    g(f"v_and_b32 v{vT+3}, 15, v0")
    g(f"v_readfirstlane_b32 s{sW}, v{vT}")
    g(f"v_lshlrev_b32 v{vKV}, 12, v{vT}")
    g(f"v_lshl_add_u32 v{vKV}, v{vT+1}, 4, v{vKV}")
    g(f"v_lshlrev_b32 v3, 4, v{vT}")
    g(f"v_lshl_add_u32 v3, v{vT+2}, 2, v3")
    g(f"v_lshlrev_b32 v2, 13, v3")
    g(f"v_lshl_add_u32 v2, v{vT+3}, 4, v2")
    g(f"v_lshlrev_b32 v3, 1, v3")
    g(f"v_lshlrev_b32 v{vT+8}, 9, v{vT}")
    g(f"v_lshl_add_u32 v{vT+8}, v{vT+3}, 5, v{vT+8}")
    g(f"v_lshl_add_u32 v{vT+8}, v{vT+2}, 3, v{vT+8}")
    g(f"v_lshlrev_b32 v{vQPr}, 4, v{vT+3}")
    g(f"v_mov_b32 v{vZero}, 0")
    g(f"v_mov_b32 v{vOne}, 1")
    g("v_mov_b32 v7, 0")
    g(f"v_lshlrev_b32 v{vT+4}, 2, v{vT+3}")
    g(f"ds_write_b32 v{vT+4}, v{vZero} offset:{L_CNT}")
    g(f"s_memrealtime s[{sNon}:{sNon+1}]")
    g(f"s_lshr_b32 s{sIt}, s{sW}, 2")
    g(f"s_lshl_b32 s{sIt}, s{sIt}, 4")
    g(f"s_lshl_b32 s{sT2}, s{sH}, 22")
    g(f"s_lshl_b32 s{sT3}, s{sSP}, 19")
    g(f"s_add_u32 s{sT2}, s{sT2}, s{sT3}")
    g("s_waitcnt lgkmcnt(0)")
    srd(SRD_DBG, 38, size=256)
    if stamps:
        g("s_mov_b32 s38, 0")
        g("s_mov_b32 m0, s38"); g("s_nop 0")
        g("v_writelane_b32 v7, s42, m0")
        g("s_add_u32 s38, s38, 1")
    STAMP()
    g(f"s_lshr_b32 s{sMat}, s{sSP}, 2")
    g(f"s_and_b32 s{sRg}, s{sSP}, 3")
    g(f"s_cmp_eq_u32 s{sMat}, 0")
    g(f"s_cselect_b64 s[{SRD_W}:{SRD_W+1}], s[{sAwq}:{sAwq+1}], s[{sBwq}:{sBwq+1}]")
    g(f"s_mov_b32 s{SRD_W+2}, 0x400000")
    g(f"s_mov_b32 s{SRD_W+3}, 0x00020000")
    g(f"s_cselect_b64 s[{SRD_X}:{SRD_X+1}], s[{sAx}:{sAx+1}], s[{sBx}:{sBx+1}]")
    g(f"s_mov_b32 s{SRD_X+2}, 1024")
    g(f"s_mov_b32 s{SRD_X+3}, 0x00020000")
    g(f"s_lshl_b32 s{sT}, s{sRg}, 8")
    g(f"buffer_load_dwordx2 v[{vT+6}:{vT+7}], v3, s[{SRD_X}:{SRD_X+3}], s{sT} offen")
    g(f"s_lshl_b32 s{sT}, s{sRg}, 20")
    g(f"s_lshl_b32 s{sT3}, s{sH}, 8")
    g(f"s_add_u32 s{sT}, s{sT}, s{sT3}")
    WQ = 8
    for i in range(4):
        g(f"buffer_load_dwordx4 v[{WQ+4*i}:{WQ+4*i+3}], v2, s[{SRD_W}:{SRD_W+3}], s{sT} offen")
        if i < 3: g(f"s_add_u32 s{sT}, s{sT}, 0x2000")
    g(f"s_cmp_lg_u32 s{sW}, 0")
    g("s_cbranch_scc1 L_nonon")
    g(f"s_or_b32 s{sNon}, s{sNon}, 1")
    g(f"v_mov_b32 v{R}, s{sNon}")
    g(f"v_mov_b32 v{R+1}, s{sNon+1}")
    g(f"v_mov_b32 v{R+2}, 0")
    g(f"v_mov_b32 v{R+3}, 0")
    g(f"s_lshl_b32 s{sT}, s{sH}, 3")
    g("s_mov_b64 exec, 1")
    g(f"buffer_atomic_cmpswap_x2 v[{R}:{R+3}], v{vZero}, s[{SRD_DBG}:{SRD_DBG+3}], s{sT} offen sc0 sc1")
    g("s_mov_b64 exec, -1")
    g.label("L_nonon")
    srd(SRD_BK, sBk, off_s=sT2, size=0x80000)
    srd(SRD_BV, sBv, off_s=sT2, size=0x80000)
    srd(SRD_WS, sWs, size=0x1000000)
    g(f"s_lshl_b32 s{sT2}, s{sG}, 22")
    g(f"s_lshl_b32 s{sT3}, s{sSP}, 17")
    g(f"s_add_u32 s{sT2}, s{sT2}, s{sT3}")
    g(f"s_add_u32 s{sT2}, s{sT2}, {12288*256}")
    srd(SRD_AK, sAk, off_s=sT2, size=0x20000)
    srd(SRD_AV, sAv, off_s=sT2, size=0x20000)
    g("s_barrier")
    g(f"s_cmp_eq_u32 s{sW}, 0")
    g("s_cbranch_scc1 L_nopf")
    call("L_PF0")
    g(f"s_waitcnt vmcnt({8*P0})")
    g("s_branch L_pfj")
    g.label("L_nopf")
    g("s_setprio 3")
    g("s_waitcnt vmcnt(1)")
    g.label("L_pfj")
    STAMP()
    acc = vS
    for j in range(2):
        g(f"v_and_b32 v{vT}, 0xffff, v{vT+6+j}")
        g(f"v_lshlrev_b32 v{vT+1}, 16, v{vT+6+j}")
        g(f"v_lshrrev_b32 v{vT+2}, 16, v{vT+6+j}")
        g(f"v_and_b32 v{vT+3}, 0xffff0000, v{vT+6+j}")
        for half in range(2):
            row = 2 * j + half
            for e in range(4):
                w = WQ + row * 4 + e
                if row == 0:
                    g(f"v_dot2_f32_bf16 v{acc+2*e}, v{w}, v{vT+2*half}, 0")
                    g(f"v_dot2_f32_bf16 v{acc+2*e+1}, v{w}, v{vT+2*half+1}, 0")
                else:
                    g(f"v_dot2c_f32_bf16 v{acc+2*e}, v{w}, v{vT+2*half}")
                    g(f"v_dot2c_f32_bf16 v{acc+2*e+1}, v{w}, v{vT+2*half+1}")
    g("s_nop 3")
    reduce_scatter8(acc)
    g(f"ds_write_b64 v{vT+8}, v[{acc}:{acc+1}] offset:{L_QS}")
    g("s_waitcnt lgkmcnt(0)")
    g("s_barrier")
    g(f"s_cmp_lg_u32 s{sW}, 0")
    g("s_cbranch_scc1 L_qwait")
    g(f"v_lshlrev_b32 v{vT+4}, 3, v0")
    for w in range(8):
        g(f"ds_read_b64 v[{R+8+2*w}:{R+8+2*w+1}], v{vT+4} offset:{L_QS+w*512}")
    g(f"v_lshlrev_b32 v{vT+5}, 4, v0")
    g(f"s_lshl_b32 s{sT3}, s{sH}, 13")
    g(f"s_add_u32 s{sT3}, s{sT3}, {QP_OFF}")
    g(f"s_lshl_b32 s{sT}, s{sSP}, 10")
    g(f"s_add_u32 s{sT}, s{sT}, s{sT3}")
    g("s_waitcnt vmcnt(0) lgkmcnt(0)")
    g(f"v_readfirstlane_b32 s{sT2}, v{R}")
    g(f"v_readfirstlane_b32 s{sRg}, v{R+1}")
    for st in (8, 4, 2):
        for k in range(st):
            g(f"v_add_f32 v{R+8+k}, v{R+8+k}, v{R+8+k+st}")
    g(f"s_cmp_eq_u32 s{sT2}, 0")
    g(f"s_cselect_b32 s{sNon}, s{sNon}, s{sT2}")
    g(f"s_cselect_b32 s{sNon+1}, s{sNon+1}, s{sRg}")
    g(f"v_mov_b32 v{R+10}, s{sNon}")
    g(f"v_mov_b32 v{R+11}, s{sNon+1}")
    g(f"buffer_store_dwordx4 v[{R+8}:{R+11}], v{vT+5}, s[{SRD_WS}:{SRD_WS+3}], s{sT} offen sc0 sc1")
    STAMP()
    g(f"s_mov_b32 s{sT2}, {pollmax}")
    g(f"s_add_u32 s{sT}, s{sT3}, 0x1000")
    g.label("L_poll")
    for k in range(8):
        g(f"buffer_load_dwordx4 v[{R+16+4*k}:{R+16+4*k+3}], v{vT+5}, s[{SRD_WS}:{SRD_WS+3}], s{sT3 if k < 4 else sT} offen offset:{(k%4)*1024} sc0 sc1")
    g("s_waitcnt vmcnt(0)")
    g(f"v_cmp_ne_u64 vcc, s[{sNon}:{sNon+1}], v[{R+18}:{R+19}]")
    for k in range(1, 8):
        g(f"v_cmp_ne_u64 s[{sSave}:{sSave+1}], s[{sNon}:{sNon+1}], v[{R+18+4*k}:{R+19+4*k}]")
        g(f"s_or_b64 vcc, vcc, s[{sSave}:{sSave+1}]")
    g("s_cmp_eq_u64 vcc, 0")
    g("s_cbranch_scc1 L_gather")
    g(f"s_sub_u32 s{sT2}, s{sT2}, 1")
    g(f"s_cmp_lg_u32 s{sT2}, 0")
    g("s_cbranch_scc1 L_poll")
    g("s_branch L_fallback")
    g.label("L_gather")
    STAMP()
    g(f"v_lshlrev_b32 v{vT+2}, 2, v0")
    for m in range(2):
        RR = R + 16 + 16 * m
        for e in range(2):
            g(f"v_add_f32 v{RR+e}, v{RR+e}, v{RR+4+e}")
            g(f"v_add_f32 v{RR+8+e}, v{RR+8+e}, v{RR+12+e}")
        for e in range(2):
            g(f"v_add_f32 v{RR+e}, v{RR+e}, v{RR+8+e}")
        g(f"v_cvt_pk_bf16_f32 v{RR}, v{RR}, v{RR+1}")
        g(f"ds_write_b32 v{vT+2}, v{RR} offset:{L_Q+256*m}")
    g.label("L_qdone")
    g("s_waitcnt lgkmcnt(0)")
    g("s_barrier")
    g("s_setprio 0")
    call("L_PF0")
    call("L_PF1")
    g("s_branch L_qread")
    g.label("L_qwait")
    call("L_PF1")
    g("s_barrier")
    g.label("L_qread")
    g(f"ds_read_b128 v[{STA}:{STA+3}], v{vQPr} offset:{L_Q}")
    g(f"ds_read_b128 v[{STB}:{STB+3}], v{vQPr} offset:{L_Q+256}")
    for ST in (STB, STA):
        g(f"v_mov_b32 v{ST+12}, 0xff800000")
        g(f"v_mov_b32 v{ST+13}, 0")
        for e in range(8):
            g(f"v_mov_b32 v{ST+4+e}, 0")
    set_pf(SRD_AK, SRD_AV)
    g(f"s_mov_b32 s{so[0]}, {D*TB}")
    g(f"s_mov_b32 s{so[1]}, 0")
    g("s_waitcnt lgkmcnt(0)")
    STAMP()
    n0 = 8 * D - 4
    body(0, STB, SRD_BK, SRD_BV, NTB, n0, n0)
    body(1, STB, SRD_PK, SRD_PV, NTA, n0, n0)
    for i in range(2, D):
        w1 = 8 * (D - i) - 4 + 16
        body(i, STB, None, None, "", w1, w1 - 4)
    g("s_branch L_disp")

    g.label("L_PF0")
    for i in range(D):
        if i == P0:
            g(f"s_setpc_b64 s[{sRet}:{sRet+1}]")
            g.label("L_PF1")
        g(f"s_mov_b32 s{so[0]}, {i*TB}")
        tile_loads(KB[i], SRD_BK, so[0], NTB)
        tile_loads(VB[i], SRD_BV, so[0], NTB)
    g(f"s_setpc_b64 s[{sRet}:{sRet+1}]")

    g.label("L_fallback")
    g(f"v_bfe_u32 v{vT}, v0, 4, 2")
    g(f"v_and_b32 v{vT+1}, 15, v0")
    g(f"v_lshlrev_b32 v{vT+2}, 13, v{vT}")
    g(f"v_lshl_add_u32 v{vT+2}, v{vT+1}, 4, v{vT+2}")
    g(f"v_lshlrev_b32 v{vT+3}, 1, v{vT}")
    g(f"v_lshlrev_b32 v{vT+4}, 4, v{vT+1}")
    g(f"v_lshl_add_u32 v{vT+4}, v{vT}, 2, v{vT+4}")
    for m, (wq_, x_) in enumerate(((sAwq, sAx), (sBwq, sBx))):
        g(f"s_mov_b64 s[{SRD_W}:{SRD_W+1}], s[{wq_}:{wq_+1}]")
        g(f"s_mov_b64 s[{SRD_X}:{SRD_X+1}], s[{x_}:{x_+1}]")
        for e in range(8):
            g(f"v_mov_b32 v{acc+e}, 0")
        g(f"s_lshl_b32 s{sT}, s{sH}, 8")
        g(f"s_mov_b32 s{sT2}, 0")
        g.label(f"L_fb{m}")
        g(f"buffer_load_dwordx4 v[{R}:{R+3}], v{vT+2}, s[{SRD_W}:{SRD_W+3}], s{sT} offen")
        g(f"buffer_load_ushort v{R+4}, v{vT+3}, s[{SRD_X}:{SRD_X+3}], s{sT2} offen")
        g("s_waitcnt vmcnt(0)")
        g(f"v_lshlrev_b32 v{R+5}, 16, v{R+4}")
        for e in range(4):
            g(f"v_dot2c_f32_bf16 v{acc+2*e}, v{R+e}, v{R+4}")
            g(f"v_dot2c_f32_bf16 v{acc+2*e+1}, v{R+e}, v{R+5}")
        g(f"s_add_u32 s{sT}, s{sT}, 0x8000")
        g(f"s_add_u32 s{sT2}, s{sT2}, 8")
        g(f"s_cmp_lt_u32 s{sT2}, 1024")
        g(f"s_cbranch_scc1 L_fb{m}")
        g("s_nop 3")
        reduce_scatter8(acc)
        g(f"v_cvt_pk_bf16_f32 v{acc}, v{acc}, v{acc+1}")
        g(f"ds_write_b32 v{vT+4}, v{acc} offset:{L_Q+256*m}")
    g("s_branch L_qdone")

    g.label("L_loop1")
    STAMP()
    body(0, STB, SRD_BK, SRD_BV, NTB)
    body(1, STA, SRD_PK, SRD_PV, NTA)
    g(f"s_add_u32 s{sIt}, s{sIt}, 1")
    g("s_branch L_disp")
    g.label("L_loop2")
    STAMP()
    body(0, STB, SRD_BK, SRD_BV, NTB)
    body(1, STB, SRD_BK, SRD_BV, NTB)
    g(f"s_add_u32 s{sIt}, s{sIt}, 1")
    g.label("L_disp")
    if sched is None:
        k_ = (6 - D) // 2
        sched = {0: dict(woA=0+k_, woB=2+k_, O2=5+k_), 1: dict(woA=1+k_, woB=3+k_, O2=6+k_)}
    n_it = 4 + (16 - D - 4) // 2
    def pf(c):
        if c < 3: return (("B", D + c + 1), ("A", c + 1))
        if c == 3: return (("B", D + 4), ("B", D + 5))
        return (("B", D + 2 * (c - 4) + 6), ("B", D + 2 * (c - 4) + 7))
    for G in (0, 1):
        for c in range(n_it):
            g(f"s_cmp_eq_u32 s{sIt}, {G*16+c}")
            g(f"s_cbranch_scc1 L_T{G}_{c}")
    g("s_branch L_Tend")
    for G in (0, 1):
        ev = sched[G]
        for c in range(n_it):
            g.label(f"L_T{G}_{c}")
            if c == 4:
                g("s_nop 3")
                for k2 in range(4, 14):
                    g(f"v_swap_b32 v{STB+k2}, v{STA+k2}")
                g(f"s_mov_b32 s{sProb}, 0")
                call("L_O1")
                arrive(1)
                for k2 in range(4, 14):
                    g(f"v_mov_b32 v{STB+k2}, v{STA+k2}")
            if c == ev["O2"]:
                g("s_nop 3")
                for k2 in range(4, 14):
                    g(f"v_mov_b32 v{STA+k2}, v{STB+k2}")
                wait_cnt(1, 8)
                call("L_O2")
                call("L_MV")
                for k2 in range(4, 14):
                    g(f"v_mov_b32 v{STB+k2}, v{STA+k2}")
            if c == ev["woA"]: call("L_IwoA")
            if c == ev["woB"]: call("L_IwoB")
            p0, p1 = pf(c)
            if c == 3: set_pf(SRD_BK, SRD_BV)
            g(f"s_mov_b32 s{so[0]}, {p0[1]*TB}")
            g(f"s_mov_b32 s{so[1]}, {p1[1]*TB}")
            g("s_branch L_loop1" if c < 4 else "s_branch L_loop2")
    g.label("L_Tend")
    STAMP()
    g(f"s_mov_b32 s{sProb}, 1")
    call("L_O1")
    arrive(1)
    wait_cnt(1, 16)
    call("L_O2")
    g("s_waitcnt lgkmcnt(0)")
    arrive(2)
    wait_cnt(2, 8)
    t1 = vT
    g(f"v_lshlrev_b32 v{t1}, 2, v0")
    for p in range(2):
        for w in range(8):
            g(f"ds_read_b32 v{R+8*p+w}, v{t1} offset:{L_YP+p*16384+w*2048}")
    g(f"s_lshl_b32 s{sT2}, s{sPidx}, 11")
    g(f"s_add_u32 s{sT3}, s{sT2}, 0x80000")
    g("s_waitcnt lgkmcnt(0)")
    for p in range(2):
        for st in (4, 2, 1):
            for k in range(st):
                g(f"v_add_f32 v{R+8*p+k}, v{R+8*p+k}, v{R+8*p+k+st}")
    g(f"buffer_store_dword v{R}, v{t1}, s[{SRD_WS}:{SRD_WS+3}], s{sT2} offen")
    g(f"buffer_store_dword v{R+8}, v{t1}, s[{SRD_WS}:{SRD_WS+3}], s{sT3} offen")
    g("s_branch L_main_fin")

    g.label("L_IwoA")
    wo_loads(sAwo, R)
    g(f"s_setpc_b64 s[{sRet}:{sRet+1}]")
    g.label("L_IwoB")
    wo_loads(sBwo, R2)
    g(f"s_setpc_b64 s[{sRet}:{sRet+1}]")
    g.label("L_MV")
    g("s_nop 3")
    for k in range(64):
        g(f"v_mov_b32 v{R+k}, v{R2+k}")
    g(f"s_setpc_b64 s[{sRet}:{sRet+1}]")

    g.label("L_O1")
    g("s_nop 3")
    mw, f, t1 = vT, vT + 1, vT + 2
    g(f"v_mov_b32 v{mw}, v{vM}")
    allreduce_rows(mw, t1, "v_max_f32")
    g(f"v_sub_f32 v{f}, v{vM}, v{mw}")
    g(f"v_mul_f32 v{f}, s{sC}, v{f}")
    g(f"v_exp_f32 v{f}, v{f}")
    g("s_nop 0")
    g(f"v_mul_f32 v{vL}, v{vL}, v{f}")
    for e in range(8):
        g(f"v_mul_f32 v{vO+e}, v{vO+e}, v{f}")
    allreduce_rows(vL, t1, "v_add_f32")
    reduce_scatter8(vO)
    g(f"s_lshl_b32 s{sT}, s{sProb}, 12")
    g(f"v_lshrrev_b32 v{t1+1}, 6, v0")
    g(f"v_lshlrev_b32 v{t1}, 9, v{t1+1}")
    g(f"v_and_b32 v{t1+2}, 15, v0")
    g(f"v_lshl_add_u32 v{t1}, v{t1+2}, 5, v{t1}")
    g(f"v_bfe_u32 v{t1+2}, v0, 4, 2")
    g(f"v_lshl_add_u32 v{t1}, v{t1+2}, 3, v{t1}")
    g(f"v_add_u32 v{t1}, s{sT}, v{t1}")
    g(f"ds_write_b64 v{t1}, v[{vO}:{vO+1}] offset:{L_OP}")
    g(f"s_lshl_b32 s{sT}, s{sProb}, 6")
    g(f"v_lshl_add_u32 v{t1}, v{t1+1}, 3, s{sT}")
    g(f"v_mov_b32 v{f}, v{vL}")
    g(f"ds_write_b64 v{t1}, v[{mw}:{f}] offset:{L_ML}")
    g(f"s_setpc_b64 s[{sRet}:{sRet+1}]")

    g.label("L_O2")
    ML = vS
    a1, a2 = vT + 8, vT + 9
    g(f"s_lshl_b32 s{sT}, s{sProb}, 6")
    g(f"v_mov_b32 v{a1}, s{sT}")
    for k in range(4):
        g(f"ds_read_b128 v[{ML+4*k}:{ML+4*k+3}], v{a1} offset:{L_ML+16*k}")
    g(f"v_lshrrev_b32 v{a1}, 6, v0")
    g(f"v_lshlrev_b32 v{a1}, 2, v{a1}")
    g(f"v_and_b32 v{a2}, 3, v0")
    g(f"v_add_u32 v{a1}, v{a1}, v{a2}")
    g(f"v_bfe_u32 v{a2}, v0, 2, 2")
    g(f"v_lshl_add_u32 v{a1}, v{a2}, 5, v{a1}")
    g(f"s_lshl_b32 s{sT}, s{sProb}, 12")
    g(f"v_lshl_add_u32 v{a1}, v{a1}, 2, s{sT}")
    for w in range(8):
        g(f"ds_read_b32 v{vO+w}, v{a1} offset:{L_OP+w*512}")
    g("s_waitcnt lgkmcnt(0)")
    Mx = vM
    g(f"v_max3_f32 v{Mx}, v{ML}, v{ML+2}, v{ML+4}")
    g(f"v_max3_f32 v{Mx}, v{Mx}, v{ML+6}, v{ML+8}")
    g(f"v_max3_f32 v{Mx}, v{Mx}, v{ML+10}, v{ML+12}")
    g(f"v_max_f32 v{Mx}, v{Mx}, v{ML+14}")
    for w in range(8):
        g(f"v_sub_f32 v{ML+2*w}, v{ML+2*w}, v{Mx}")
    for w in range(8):
        g(f"v_mul_f32 v{ML+2*w}, s{sC}, v{ML+2*w}")
    for w in range(8):
        g(f"v_exp_f32 v{ML+2*w}, v{ML+2*w}")
    g("s_nop 0")
    g(f"v_mul_f32 v{vL}, v{ML}, v{ML+1}")
    g(f"v_mul_f32 v{a2}, v{ML}, v{vO}")
    for w in range(1, 8):
        g(f"v_fmac_f32 v{vL}, v{ML+2*w}, v{ML+2*w+1}")
        g(f"v_fmac_f32 v{a2}, v{ML+2*w}, v{vO+w}")
    g(f"v_cvt_pk_bf16_f32 v{a2}, v{a2}, 0")
    g("s_nop 1")
    for i in range(16):
        g(f"v_readlane_b32 s{sOL+i}, v{a2}, {i}")
    g(f"s_lshl_b32 s{sT}, s{sProb}, 8")
    g(f"s_add_u32 s{sT}, s{sT}, s{sPidx}")
    g(f"s_lshl_b32 s{sT}, s{sT}, 3")
    g(f"s_add_u32 s{sT}, s{sT}, 0x100000")
    g(f"s_waitcnt vmcnt(16)")
    g(f"v_cmp_eq_u32 vcc, 0, v0")
    g(f"s_and_saveexec_b64 s[{sSave}:{sSave+1}], vcc")
    g("s_cbranch_execz L_O_noml")
    g(f"buffer_store_dwordx2 v[{vM}:{vL}], v{vZero}, s[{SRD_WS}:{SRD_WS+3}], s{sT} offen")
    g.label("L_O_noml")
    g(f"s_mov_b64 exec, s[{sSave}:{sSave+1}]")
    y = vO
    for i in range(16):
        g(f"s_lshl_b32 s{sOH+(i%4)}, s{sOL+i}, 16")
        for e in range(4):
            w = R + 4 * i + e
            if i == 0:
                g(f"v_dot2_f32_bf16 v{y+2*e}, v{w}, s{sOL+i}, 0")
                g(f"v_dot2_f32_bf16 v{y+2*e+1}, v{w}, s{sOH+(i%4)}, 0")
            else:
                g(f"v_dot2c_f32_bf16 v{y+2*e}, s{sOL+i}, v{w}")
                g(f"v_dot2c_f32_bf16 v{y+2*e+1}, s{sOH+(i%4)}, v{w}")
    g(f"s_lshl_b32 s{sT}, s{sProb}, 14")
    g(f"v_lshl_add_u32 v{a1}, v0, 5, s{sT}")
    g("s_nop 1")
    g(f"ds_write_b128 v{a1}, v[{y}:{y+3}] offset:{L_YP}")
    g(f"ds_write_b128 v{a1}, v[{y+4}:{y+7}] offset:{L_YP+16}")
    g(f"s_setpc_b64 s[{sRet}:{sRet+1}]")

    g.label("L_main_fin")
    if stamps:
        STAMP()
        g("v_lshrrev_b32 v8, 6, v0")
        g("v_and_b32 v9, 63, v0")
        g("v_lshlrev_b32 v8, 6, v8")
        g("v_lshl_add_u32 v8, v9, 2, v8")
        g("s_lshl_b32 s39, s2, 9")
        g("s_add_u32 s39, s39, 0x800000")
        g("v_cmp_gt_u32 vcc, 16, v9")
        g("s_and_saveexec_b64 s[100:101], vcc")
        g(f"buffer_store_dword v7, v8, s[{SRD_WS}:{SRD_WS+3}], s39 offen")
    g.label("L_main_end")
    g("s_endpgm")

    fn = final_kernel(g)

    hdr = open(f"cdna_kernels/{NAME}.s.ref").read().split("\n")
    cm = [l for l in hdr if l.startswith(";") and "@launch" not in l]
    out = "\n".join(cm) + "\n"
    out += f"; @launch kernel={kn} grid=(256,1,1) block=(512,1,1) lds=53248\n"
    out += f"; @launch kernel={fn} grid=(64,1,1) block=(256,1,1) lds=2048\n"
    out += '.amdgcn_target "amdgcn-amd-amdhsa--gfx950"\n.text\n'
    out += g.text()
    out += '.section .rodata,"a"\n'
    for k, nv, ns in ((kn, 256, 102), (fn, 32, 32)):
        out += f""".p2align 6
.amdhsa_kernel {k}
  .amdhsa_next_free_vgpr {nv}
  .amdhsa_next_free_sgpr {ns}
  .amdhsa_accum_offset {nv}
  .amdhsa_group_segment_fixed_size 0
  .amdhsa_kernarg_size 104
  .amdhsa_user_sgpr_count 2
  .amdhsa_user_sgpr_kernarg_segment_ptr 1
  .amdhsa_system_sgpr_workgroup_id_x 1
.end_amdhsa_kernel
"""
    return out

if __name__ == "__main__":
    import argparse
    ap = argparse.ArgumentParser()
    ap.add_argument("-o", default=f"cdna_kernels/{NAME}.s")
    ap.add_argument("--stamps", action="store_true")
    ap.add_argument("--pollmax", type=int, default=40000)
    ap.add_argument("--p0", type=int, default=1)
    ap.add_argument("--D", type=int, default=6)
    ap.add_argument("--ntA", action="store_true")
    a = ap.parse_args()
    open(a.o, "w").write(build(stamps=a.stamps, ntA=a.ntA, pollmax=a.pollmax, P0=a.p0, D=a.D))
```
